```python
import torch

def _softmax(x, axis=-1):
    return torch.softmax(x, dim=axis)
def _gelu(x):
    return torch.nn.functional.gelu(x, approximate="tanh")
def _silu(x):
    return torch.nn.functional.silu(x)
def _sigmoid(x):
    return torch.sigmoid(x)
def _layernorm(x, axis=-1, eps=1e-5):
    m = x.mean(dim=axis, keepdim=True)
    v = x.var(dim=axis, keepdim=True, unbiased=False)
    return (x - m) / torch.sqrt(v + eps)
def _scatter_add(tgt, idx, src, axis=0):
    return tgt.clone().index_add_(axis, idx, src)
def _segment_sum(src, seg, n):
    out = torch.zeros((n,) + src.shape[1:], dtype=src.dtype)
    return out.index_add_(0, seg, src)
def _pad(x, pw):
    flat = tuple(v for pair in reversed(pw) for v in pair)
    return torch.nn.functional.pad(x, flat)

kernel_name = 'concat_heads__linear_attn_block__sliding_local_dilated__prompt'

def setup_inputs():

    _w = (lambda a: (lambda t: t.to(torch.bfloat16) if t.is_floating_point() else t)(torch.as_tensor(a)))
    def _A_setup():
        B, S, D = 1, 2048, 640
        return {
            "x": _w((lambda *s: torch.randn(*s, dtype=torch.bfloat16) * 0.05)(B, S, D)),
            "wqkv": _w((lambda *s: torch.randn(*s, dtype=torch.bfloat16) * 1.6)(D, 3 * D)),
            "wo": _w((lambda *s: torch.randn(*s, dtype=torch.bfloat16) * 0.8)(D, D)),
        }
    _A_in = _A_setup()

    def _B_setup():
        B, S, D = 1, 2048, 640
        return {
            "x": _w((lambda *s: torch.randn(*s, dtype=torch.bfloat16) * 0.2)(B, S, D)),
            "wqkv": _w((lambda *s: torch.randn(*s, dtype=torch.bfloat16) * 0.2)(D, 3 * D)),
            "wo": _w((lambda *s: torch.randn(*s, dtype=torch.bfloat16) * 0.05)(D, D)),
        }
    _B_in = _B_setup()

    return {
        "A_x": _A_in["x"],
        "A_wqkv": _A_in["wqkv"],
        "A_wo": _A_in["wo"],
        "B_x": _B_in["x"],
        "B_wqkv": _B_in["wqkv"],
        "B_wo": _B_in["wo"],
    }

def reference(A_x, A_wqkv, A_wo, B_x, B_wqkv, B_wo):
    def _A_ref(x, wqkv, wo):
        B, S, D = x.shape
        H = 32; Dh = D // H
        qkv = (lambda x, *d: x.permute(*d))((x @ wqkv).reshape(B, S, 3, H, Dh), 2, 0, 3, 1, 4)
        q, k, v = qkv[0], qkv[1], qkv[2]
        phi = lambda t: torch.where(t > 0, t + 1, torch.exp(t)) + 1e-6
        pq, pk = phi(q), phi(k)
        kv = torch.einsum("bhsd,bhse->bhde", pk, v)
        z = torch.einsum("bhsd->bhd", pk)
        num = torch.einsum("bhqd,bhde->bhqe", pq, kv)
        den = torch.einsum("bhqd,bhd->bhq", pq, z)[..., None] + 1e-6
        o = num / den
        return (lambda x, *d: x.permute(*d))(o, 0, 2, 1, 3).reshape(B, S, D) @ wo

    def _B_ref(x, wqkv, wo):
        B, S, D = x.shape
        H = 32; Dh = D // H
        W, dil = 8, 2
        qkv = (lambda x, *d: x.permute(*d))((x @ wqkv).reshape(B, S, 3, H, Dh), 2, 0, 3, 1, 4)
        q, k, v = qkv[0], qkv[1], qkv[2]
        scale = Dh ** -0.5
        pos = torch.arange(S)
        off = torch.arange(W) * dil
        idx = pos[:, None] - off[None, :]
        mask = idx >= 0
        idx_c = torch.where(mask, idx, 0).reshape(-1)
        kg = k[:, :, idx_c, :].reshape(B, H, S, W, Dh)
        vg = v[:, :, idx_c, :].reshape(B, H, S, W, Dh)
        logits = torch.einsum("bhsd,bhswd->bhsw", q, kg) * scale
        logits = torch.where(mask[None, None, :, :], logits, -1e9)
        attn = _softmax(logits, axis=-1)
        o = torch.einsum("bhsw,bhswd->bhsd", attn, vg)
        return (lambda x, *d: x.permute(*d))(o, 0, 2, 1, 3).reshape(B, S, D) @ wo

    a = _A_ref(A_x, A_wqkv, A_wo)
    b = _B_ref(B_x, B_wqkv, B_wo)
    return torch.concatenate([a, b], axis=-1)
```

```python
import re

REG_RE = re.compile(r'\b([vas])(\d+)\b|\b([vas])\[(\d+):(\d+)\]')

def regs_of(tok):
    out = set()
    tok = tok.strip()
    if tok in ('vcc', 'vcc_lo', 'vcc_hi'): return {('s', 'vcc')}
    if tok in ('exec', 'exec_lo', 'exec_hi'): return {('s', 'exec')}
    if tok == 'm0': return {('s', 'm0')}
    for m in REG_RE.finditer(tok):
        if m.group(1): out.add((m.group(1), int(m.group(2))))
        else:
            for i in range(int(m.group(4)), int(m.group(5)) + 1): out.add((m.group(3), i))
    return out

TRANS = ('v_exp_f32', 'v_log_f32', 'v_rcp_f32', 'v_rsq_f32', 'v_sqrt_f32', 'v_sin_f32', 'v_cos_f32')

class Ins:
    __slots__ = ('text', 'op', 'ops', 'kind', 'w', 'r', 'srcc', 'ab', 'data')
    def __init__(self, text):
        self.text = text
        t = text.split(';')[0].strip()
        self.w = set(); self.r = set(); self.srcc = set(); self.ab = set(); self.data = set()
        if not t or t.endswith(':') or t.startswith('.'):
            self.op = ''; self.kind = 'label' if t.endswith(':') else 'none'; self.ops = []; return
        parts = t.split(None, 1)
        self.op = op = parts[0]
        rest = parts[1] if len(parts) > 1 else ''
        ops = [o.strip() for o in rest.split(',')] if rest else []
        self.ops = ops
        R = [regs_of(o.split(' ')[0] if i == len(ops) - 1 and not o.startswith(('v[', 'a[', 's[')) else o.split(' ')[0]) for i, o in enumerate(ops)]
        if op.startswith('v_mfma'):
            self.kind = 'mfma'; self.w = R[0]; self.ab = R[1] | R[2]; self.srcc = R[3]; self.r = self.ab | self.srcc
        elif op.startswith('v_'):
            self.kind = 'valu'
            if op.startswith('v_cmp'):
                self.w = R[0]; self.r = set().union(*R[1:])
                if op.startswith('v_cmpx'): self.w |= {('s', 'exec')}
            elif op.startswith(('v_permlane16_swap', 'v_permlane32_swap', 'v_swap')):
                self.w = R[0] | R[1]; self.r = R[0] | R[1]
            elif op.startswith(('v_add_co', 'v_sub_co', 'v_addc_co', 'v_subb_co')):
                self.w = R[0] | R[1]; self.r = set().union(*R[2:])
            else:
                self.w = R[0]; self.r = set().union(*R[1:]) if len(R) > 1 else set()
                if op.startswith(('v_fmac', 'v_mac', 'v_writelane')) or 'dpp' in op or 'row_mask' in t: self.r |= R[0]
                if op.startswith('v_cndmask') and len(ops) == 3: self.r |= {('s', 'vcc')}
        elif op.startswith('ds_'):
            self.kind = 'ds'
            if op.startswith('ds_read') or op.startswith('ds_bperm') or op.startswith('ds_swiz'):
                self.w = R[0]; self.r = set().union(*R[1:])
            else:
                self.r = set().union(*R)
        elif op.startswith(('buffer_', 'global_')):
            self.kind = 'vmem'
            lds = re.search(r'\blds\b', t) is not None
            if op in ('buffer_wbl2', 'buffer_inv'): pass
            elif 'load' in op and not lds:
                self.w = R[0]; self.r = set().union(*R[1:])
            elif 'atomic' in op and 'sc0' in t:
                self.w = R[0]; self.r = set().union(*R)
            else:
                self.r = set().union(*R)
                if lds: self.r |= {('s', 'm0')}
                if 'store' in op and ('x4' in op or 'x3' in op):
                    self.data = R[0] if op.startswith('buffer_') else R[1]
        elif op.startswith('s_'):
            self.kind = 'salu'
            if op in ('s_waitcnt', 's_barrier', 's_nop', 's_endpgm', 's_sleep', 's_setprio') or op.startswith(('s_branch', 's_cbranch')):
                pass
            elif op.startswith(('s_cmp', 's_bitcmp')):
                self.r = set().union(*R)
            else:
                self.w = R[0]; self.r = set().union(*R[1:]) if len(R) > 1 else set()
                if 'saveexec' in op: self.w |= {('s', 'exec')}
        else:
            raise ValueError('unknown instruction: ' + text)
    def states(self):
        if self.kind in ('label', 'none'): return 0
        if self.op == 's_nop': return int(self.ops[0]) + 1
        return 1

def vset(s): return {x for x in s if x[0] in 'va'}
def sset(s): return {x for x in s if x[0] == 's'}

def need(p, c):
    n = 0
    pk, ck = p.kind, c.kind
    if pk == 'valu':
        pw = vset(p.w); ps = sset(p.w)
        if ck == 'mfma' and pw & c.r: n = max(n, 2)
        if ck == 'mfma' and ('s', 'exec') in ps: n = max(n, 4)
        if ck == 'valu':
            if c.op.startswith('v_permlane') and pw & c.r: n = max(n, 2)
            if ('dpp' in c.op or 'row_mask' in c.text or 'quad_perm' in c.text) and pw & c.r: n = max(n, 2)
            if c.op.startswith(('v_readlane', 'v_readfirstlane')) and pw & c.r: n = max(n, 1)
            if p.op.replace('_e64', '').replace('_e32', '') in TRANS and pw & c.r: n = max(n, 1)
            if ps & c.r: n = max(n, 4 if c.op.startswith(('v_readlane', 'v_writelane')) else 2)
            if ('s', 'exec') in ps: n = max(n, 5)
        if ck == 'vmem' and ps & c.r: n = max(n, 5)
        if ck == 'salu' and ps & c.r: n = max(n, 1)
    if pk == 'mfma':
        if ck == 'mfma':
            if p.w & c.ab: n = max(n, 8)
            if p.w & c.srcc and p.w != c.srcc: n = max(n, 6)
            if p.w & c.w and not (p.w == c.srcc == c.w): n = max(n, 6 if p.w != c.w else 8) if not (p.w == c.srcc) else n
        elif ck in ('valu', 'ds', 'vmem'):
            if p.w & (c.r | c.w): n = max(n, 8)
            if ck == 'valu' and p.srcc & c.w: n = max(n, 3)
    if pk == 'vmem' and p.data:
        if p.data & c.w: n = max(n, 2 if ck == 'valu' else 1)
    if pk == 'salu' and ('s', 'm0') in p.w and ck == 'vmem' and ('s', 'm0') in c.r: n = max(n, 1)
    return n

def pad_hazards(lines, window=10):
    out = []; added = 0
    for text in lines:
        c = Ins(text)
        if c.kind not in ('label', 'none'):
            dist = 0; short = 0
            for p in reversed(out):
                if dist >= window: break
                if p.kind not in ('label', 'none'):
                    n = need(p, c)
                    if n > dist: short = max(short, n - dist)
                dist += p.states()
            if short:
                out.append(Ins(f's_nop {short-1}')); added += short
        out.append(c)
    return [i.text for i in out], added

class Em:
    def __init__(self):
        self.L = []; self.vm = []; self.lg = []
    def __call__(self, s):
        for ln in s.split('\n'):
            ln = ln.strip()
            if ln: self.L.append(ln)
    def vmem(self, s, tag=None):
        self(s); self.vm.append(tag)
        assert len(self.vm) <= 63, 'vmcnt overflow'
    def lds(self, s, tag=None):
        self(s); self.lg.append(tag)
    def _n(self, q, tags):
        idx = [i for i, t in enumerate(q) if t in tags]
        return None if not idx else len(q) - 1 - max(idx)
    def wait(self, vm=(), lg=(), force=False):
        parts = []
        n = self._n(self.vm, set(vm))
        if n is not None:
            parts.append(f'vmcnt({n})'); self.vm = self.vm[len(self.vm) - n:] if n else []
        n = self._n(self.lg, set(lg))
        if n is not None:
            n2 = min(n, 15)
            parts.append(f'lgkmcnt({n2})'); self.lg = self.lg[len(self.lg) - n2:] if n2 else []
        if parts: self('s_waitcnt ' + ' '.join(parts))
    def wait_all(self, vm=True, lg=True):
        parts = []
        if vm: parts.append('vmcnt(0)'); self.vm = []
        if lg: parts.append('lgkmcnt(0)'); self.lg = []
        self('s_waitcnt ' + ' '.join(parts))

def vr(b, n=1): return f'v{b}' if n == 1 else f'v[{b}:{b+n-1}]'
def ar(b, n=1): return f'a{b}' if n == 1 else f'a[{b}:{b+n-1}]'
def sr(b, n=1): return f's{b}' if n == 1 else f's[{b}:{b+n-1}]'
```

```python
import sys, struct
from asmlib import *

NAME = "concat_heads__linear_attn_block__sliding_local_dilated__prompt"
def f32(x): return struct.unpack('<I', struct.pack('<f', x))[0]
LOG2E = 1.4426950408889634
EPS = 1e-6
WS_O = 0
WS_PART = 0x600000
WS_STAMP = 0x700000
WS_BYTES = 0x800000
MF = 'v_mfma_f32_16x16x32_bf16'

class Cfg:
    stamps = False
    lead = 5
    waitgrp = 2
    poll_unit = 13
    sig_unit = 10
    rot = True
    k2rot = True

S_WAVE, S_RT, S_GRP, S_ROT, S_BR = 36, 37, 38, 39, 40
SRD_X, SRD_W, SRD_WS, SRD_AUX, SRD_DBG = 16, 20, 24, 28, 32
S_ROWM = 60
S_COLM = 68
S_STAMP = 80

def stamp(em, cfg, i):
    if cfg.stamps:
        em(f's_memtime {sr(S_STAMP + 2*i, 2)}')
        em.lg.append('stamp'); em.lg.append('stamp')

def store_stamps(em, cfg, n, kern):
    if not cfg.stamps: return
    em('s_waitcnt vmcnt(0) lgkmcnt(0)'); em.vm = []; em.lg = []
    em('s_memrealtime s[98:99]\n s_waitcnt lgkmcnt(0)')
    em(f's_lshl_b32 s3, s2, 2\n s_add_u32 s3, s3, s{S_WAVE}\n s_lshl_b32 s3, s3, 7\n s_add_u32 s3, s3, {WS_STAMP + kern*0x40000}')
    em('s_mov_b64 exec, 1\n v_mov_b32 v1, s3')
    for i in list(range(n)) + [8, 9]:
        em(f'v_mov_b32 v2, s{S_STAMP+2*i}\n v_mov_b32 v3, s{S_STAMP+2*i+1}\n buffer_store_dwordx2 v[2:3], v1, {sr(SRD_WS,4)}, 0 offen offset:{8*i}\n s_nop 1')
    em('s_mov_b64 exec, -1')

def srd(em, d, lo, hi, nbytes):
    em(f's_mov_b32 s{d}, s{lo}\n s_mov_b32 s{d+1}, s{hi}\n s_mov_b32 s{d+2}, {nbytes}\n s_mov_b32 s{d+3}, 0x20000')

def div10(em, q, r, i, t):
    em(f'v_mul_u32_u24 v{q}, 6554, v{i}\n v_lshrrev_b32 v{q}, 16, v{q}\n v_mul_u32_u24 v{t}, 10, v{q}\n v_sub_u32 v{r}, v{i}, v{t}')

def masks(em):
    for h in range(4):
        m = 0xFFFF << (16*h)
        em(f's_mov_b32 s{S_ROWM+2*h}, {m & 0xffffffff:#x}\n s_mov_b32 s{S_ROWM+2*h+1}, {m >> 32:#x}')
        c = 0x000F000F << (4*h)
        em(f's_mov_b32 s{S_COLM+2*h}, {c:#x}\n s_mov_b32 s{S_COLM+2*h+1}, {c:#x}')

class Stream:
    def __init__(self, em, cfg): self.em = em; self.cfg = cfg; self.fill = []; self.ftag = {}
    def push(self, *fns, tag=None):
        self.fill.extend(fns); self.ftag.update({id(f): tag for f in fns})
    def issue_reads(self, it):
        return [(lambda t=t: self.em.lds(t, it['tag'])) for t in it['reads']]
    def run(self, items, drain=True):
        em = self.em; lead = self.cfg.lead; wg = self.cfg.waitgrp
        n = len(items)
        for j in range(min(lead, n)):
            if items[j].get('pre'): items[j]['pre']()
            while self.fill and items[j].get('flush'): self.fill.pop(0)()
            for f in self.issue_reads(items[j]): f()
        for i, it in enumerate(items):
            rd = []
            if i + lead < n:
                nx = items[i + lead]
                if nx.get('pre'): nx['pre']()
                rd = self.issue_reads(nx)
            tags = list(it.get('need', [])) + [it['tag']]
            if i % wg == 0:
                for k in range(1, wg):
                    if i + k < n: tags += [items[i + k]['tag']] + list(items[i + k].get('need', []))
            while any(self.ftag.get(id(f)) in tags for f in self.fill): self.fill.pop(0)()
            em.wait(lg=tags)
            nm = len(it['mf'])
            for k, m in enumerate(it['mf']):
                em(m)
                slots = 2
                take = (len(rd) + (nm - k) - 1) // (nm - k)
                for _ in range(take): rd.pop(0)(); slots -= 1
                while slots > 0 and self.fill:
                    self.fill.pop(0)(); slots -= 1
        if drain:
            while self.fill: self.fill.pop(0)()

def k1_setup(em, cfg):
    em('s_cmp_ge_u32 s2, 256\n s_cbranch_scc1 L1_end')
    if cfg.stamps: em('s_memrealtime s[96:97]')
    stamp(em, cfg, 0)
    em('s_load_dwordx4 s[4:7], s[0:1], 0\n s_load_dwordx4 s[8:11], s[0:1], 24\n s_load_dwordx4 s[12:15], s[0:1], 56')
    em(f'''s_and_b32 s41, s2, 7
        s_lshr_b32 s42, s2, 3
        s_lshr_b32 s{S_BR}, s41, 2
        s_and_b32 s43, s42, 7
        s_lshr_b32 s44, s42, 3
        s_and_b32 s45, s41, 2
        s_lshl_b32 s45, s45, 2
        s_add_u32 s{S_RT}, s45, s43
        s_and_b32 s45, s41, 1
        s_lshl_b32 s45, s45, 2
        s_add_u32 s{S_GRP}, s45, s44
        s_lshl_b32 s45, s44, 1
        s_add_u32 s45, s45, s43
        s_and_b32 s45, s45, 7
        s_mul_i32 s45, s45, 10
        s_lshr_b32 s{S_ROT}, s45, 3''')
    if not cfg.rot: em(f's_mov_b32 s{S_ROT}, 0')
    em(f'v_lshrrev_b32 v1, 6, v0\n v_and_b32 v0, 63, v0\n v_readfirstlane_b32 s{S_WAVE}, v1')
    em(f'''s_lshl_b32 s45, s{S_RT}, 7
        s_lshl_b32 s46, s{S_WAVE}, 5
        s_add_u32 s46, s46, s45
        s_mul_i32 s46, s46, 1280
        s_mul_i32 s45, s45, 1280
        s_sub_u32 s45, s45, 20480
        v_lshrrev_b32 v1, 3, v0
        v_and_b32 v2, 7, v0
        v_xor_b32 v2, v2, v1
        v_mul_u32_u24 v1, 1280, v1
        v_lshl_add_u32 v1, v2, 4, v1
        v_add_u32 v4, s46, v1
        v_add_u32 v5, 10240, v4
        v_add_u32 v6, 20480, v4
        v_add_u32 v7, 30720, v4
        v_add_u32 v8, s45, v1''')

def wpattern(em, dst, s_i64, row_bytes, s_add, kind='qkv'):
    em(f'v_add_u32 v1, {s_i64}, v0')
    div10(em, 2, 3, 1, 9)
    if kind == 'qkv':
        em('v_bfe_u32 v1, v2, 2, 2\n v_lshlrev_b32 v1, 3, v1\n v_lshrrev_b32 v9, 4, v2\n v_lshl_add_u32 v1, v9, 2, v1\n v_and_b32 v9, 3, v2\n v_add_u32 v1, v1, v9')
    elif kind == 'omain':
        em('v_lshrrev_b32 v1, 4, v2\n v_mul_u32_u24 v1, 20, v1\n v_and_b32 v9, 15, v2\n v_add_u32 v1, v1, v9')
    elif kind == 'orem':
        em('v_bfe_u32 v1, v2, 2, 2\n v_and_b32 v9, 3, v2\n v_cndmask_b32 v10, v9, v1, vcc\n v_cndmask_b32 v1, v1, v9, vcc\n v_mul_u32_u24 v10, 20, v10\n v_add_u32 v1, v1, v10\n v_lshrrev_b32 v9, 4, v2\n v_mul_u32_u24 v9, 80, v9\n v_add3_u32 v1, v1, v9, 16')
    em(f'v_mul_u32_u24 v1, {row_bytes}, v1\n v_lshl_add_u32 v1, v3, 4, v1\n v_add_u32 v{dst}, {s_add}, v1')

def xread_addr(em, d0, d1, s_base):
    em(f'''v_and_b32 v1, 15, v0
        v_lshrrev_b32 v2, 4, v0
        v_and_b32 v3, 7, v0
        v_xor_b32 v2, v2, v3
        v_lshlrev_b32 v1, 7, v1
        v_lshl_add_u32 v1, v2, 4, v1
        v_add_u32 v{d0}, {s_base}, v1
        v_xor_b32 v{d1}, 64, v{d0}''')

def tr_addr(em, dn, dr):
    em(f'''v_lshrrev_b32 v1, 2, v0
        v_mul_u32_u24 v1, 160, v1
        v_and_b32 v2, 3, v0
        v_lshl_add_u32 v{dn}, v2, 3, v1
        v_mul_u32_u24 v2, 40, v2
        v_add3_u32 v{dr}, v1, v2, 32''')

B_NS = 6; B_SLOT = 15360; B_XBASE = B_NS * B_SLOT; B_XS = 3; B_HBASE = B_XBASE + 4 * B_XS * 4096
B_LDS = B_HBASE + 3 * 2048
B_EXCH = 2 * B_SLOT
def emit_B(em, cfg):
    KT = lambda mb, b: 32 + (mb*5 + b)*4
    QT = lambda mb, b: 72 + (mb*5 + b)*4
    VV = lambda b, mb: 112 + b*8 + mb*4
    HK, HK4, HV, HV4 = 152, 156, 160, 164
    SS = lambda u: 168 + u*8
    CCUR, CPREV, CPREV0, SEL = 232, 236, 240, 244
    WR, XB, HB, KPREV = 0, 32, 64, 80
    em(f's_mul_i32 s47, s{S_GRP}, 160')
    for t in range(4):
        em(f's_lshl_b32 s41, s{S_WAVE}, 2\n s_add_u32 s41, s41, {t}\n s_lshl_b32 s{48+t}, s41, 10')
        em('s_mul_i32 s42, s41, 52\n s_lshr_b32 s42, s42, 8\n s_mul_i32 s43, s42, 5\n s_sub_u32 s43, s41, s43\n s_lshl_b32 s43, s43, 6\n s_mul_i32 s42, s42, 1280\n s_add_u32 s42, s42, s47')
        wpattern(em, 11 + t, 's43', 3840, 's42')
    em(f's_cmp_eq_u32 s{S_WAVE}, 3\n s_cselect_b64 vcc, -1, 0\n v_cndmask_b32 v14, v14, v8, vcc')
    VW = 11
    for sl in range(B_NS):
        em(f's_add_u32 s41, s51, {sl*B_SLOT}\n s_cmp_eq_u32 s{S_WAVE}, 3\n s_cselect_b32 s{52+sl}, {B_HBASE + ((sl+1) % 6)*1024}, s41')
    em(f's_mul_i32 s58, s{S_WAVE}, {B_XS*4096}\n s_add_u32 s58, s58, {B_XBASE}')
    em('s_waitcnt lgkmcnt(0)'); em.lg = []
    srd(em, SRD_X, 8, 9, 2621440); srd(em, SRD_W, 10, 11, 2457600)
    em(f's_cmp_eq_u32 s{S_WAVE}, 3\n s_cselect_b32 s{SRD_AUX}, s8, s10\n s_cselect_b32 s{SRD_AUX+1}, s9, s11\n s_cselect_b32 s{SRD_AUX+2}, s{SRD_X+2}, s{SRD_W+2}\n s_mov_b32 s{SRD_AUX+3}, 0x20000')
    em(f's_mul_i32 s44, s{S_ROT}, 245760\n s_lshl_b32 s45, s{S_ROT}, 7')
    def xpart(p):
        fs = []
        for o in (2*(p & 1), 2*(p & 1) + 1):
            fs.append(lambda o=o: em(f's_add_u32 m0, s58, {((p >> 1) % B_XS)*4096 + o*1024}'))
            fs.append(lambda o=o: em.vmem(f'buffer_load_dwordx4 v{4+o}, {sr(SRD_X,4)}, s45 offen lds', ('u', p - 1)))
        return fs
    def unit(u):
        fs = []
        sl = u % B_NS
        for t in range(3):
            fs.append(lambda t=t: em(f's_add_u32 m0, s{48+t}, {sl*B_SLOT}'))
            fs.append(lambda t=t: em.vmem(f'buffer_load_dwordx4 v{VW+t}, {sr(SRD_W,4)}, s44 offen lds', ('u', u)))
        p = u + 1
        if (p & 1) == 0:
            fs.append(lambda: em('s_add_u32 s45, s45, 128\n s_cmp_eq_u32 s45, 1280\n s_cselect_b32 s45, 0, s45'))
        fs.append(lambda: em(f's_add_u32 s46, s45, {(p & 1)*10240}\n s_cmp_eq_u32 s{S_WAVE}, 3\n s_cselect_b32 s46, s46, s44'))
        fs.append(lambda: em(f's_mov_b32 m0, s{52+sl}'))
        fs.append(lambda: em.vmem(f'buffer_load_dwordx4 v{VW+3}, {sr(SRD_AUX,4)}, s46 offen lds', ('u', u)))
        if p < 20: fs += xpart(p)
        fs.append(lambda: em('s_add_u32 s44, s44, 122880\n s_cmp_eq_u32 s44, 2457600\n s_cselect_b32 s44, 0, s44'))
        return fs
    em(f's_mov_b32 m0, {B_HBASE}')
    em.vmem(f'buffer_load_dwordx4 v8, {sr(SRD_X,4)}, s45 offen lds', ('u', 0))
    for f in xpart(0): f()
    em.vm = [('u', 0)] * len(em.vm)
    for u in range(B_NS - 1):
        for f in unit(u): f()
    stamp(em, cfg, 1)
    srd(em, SRD_WS, 14, 15, WS_BYTES)
    masks(em)
    xread_addr(em, 16, 17, 's58')
    xread_addr(em, 18, 19, B_HBASE)
    tr_addr(em, 20, 21)
    em(f'v_add_u32 v22, {4*B_SLOT}, v20\n v_add_u32 v23, {4*B_SLOT}, v21')
    em(f's_mul_i32 s41, s{S_WAVE}, 40\n v_add_u32 v24, s41, v20\n v_add_u32 v25, s41, v22')
    XA, HA, TN, TR, TH = 16, 18, (20, 22), (21, 23), (24, 25)
    em('v_and_b32 v1, 15, v0\n v_lshrrev_b32 v2, 4, v0\n v_lshlrev_b32 v2, 2, v2\n v_and_b32 v3, 1, v0')
    em(f'v_mov_b32 v9, {f32(-1e38):#x}')
    em(f's_lshl_b32 s41, s{S_RT}, 2\n s_add_u32 s41, s41, s{S_WAVE}\n s_cmp_eq_u32 s41, 0\n s_cselect_b64 s[42:43], 0, -1')
    for r in range(4):
        em(f'v_add_u32 v10, {r}, v2\n v_cmp_eq_u32 s[76:77], {r & 1}, v3\n v_cmp_le_u32 vcc, v10, v1\n s_and_b64 s[78:79], s[76:77], vcc\n s_andn2_b64 s[76:77], s[76:77], vcc')
        em(f'v_cndmask_b32 v{CCUR+r}, v9, 0, s[78:79]\n v_cndmask_b32 v{CPREV+r}, v9, 0, s[76:77]\n s_and_b64 s[76:77], s[76:77], s[42:43]\n v_cndmask_b32 v{CPREV0+r}, v9, 0, s[76:77]')
    for j in range(2):
        lo, hi = (0x0c0c0100, 0x01000c0c) if j == 0 else (0x0c0c0302, 0x03020c0c)
        em(f'v_mov_b32 v10, {lo:#x}\n v_mov_b32 v26, {hi:#x}\n v_cmp_eq_u32 vcc, 1, v3\n v_cndmask_b32 v10, v10, v26, vcc')
        em(f'v_add3_u32 v26, v2, v3, {2*j}\n v_cmp_le_u32 vcc, v26, v1\n v_mov_b32 v26, 0x0c0c0c0c\n v_cndmask_b32 v{SEL+2+j}, v26, v10, vcc\n v_cndmask_b32 v{SEL+j}, v10, v26, vcc')
    em(f's_mul_i32 s41, s{S_WAVE}, 5120\n s_add_u32 s41, s41, {B_EXCH}\n v_lshlrev_b32 v1, 3, v0\n v_add_u32 v28, s41, v1\n v_add_u32 v26, 5120, v28')
    em(f's_lshl_b32 s41, s{S_WAVE}, 9\n s_add_u32 s41, s41, {B_EXCH}\n v_add_u32 v27, s41, v1\n v_add_u32 v30, {B_EXCH}, v1')
    ostore_addr(em, 29, 31)

    st = Stream(em, cfg)
    items = []
    def xreads(kp):
        fs = []
        for ks in range(2):
            for mb in range(2):
                fs.append(lambda ks=ks, mb=mb: em.lds(f'ds_read_b128 {ar(XB + (kp%2)*16 + ks*8 + mb*4, 4)}, v{XA+ks} offset:{(kp % B_XS)*4096 + mb*2048}', ('x', kp)))
            fs.append(lambda ks=ks: em.lds(f'ds_read_b128 {ar(HB + (kp%2)*8 + ks*4, 4)}, v{HA+ks} offset:{(kp % 3)*2048}', ('x', kp)))
        return fs
    for s in range(20):
        kp, ks = s >> 1, s & 1
        sl = s % B_NS; win = 1 if sl >= 4 else 0; base = (sl - 4*win) * B_SLOT
        xf = lambda mb: ar(XB + (kp%2)*16 + ks*8 + mb*4, 4)
        hf = ar(HB + (kp%2)*8 + ks*4, 4)
        C = lambda d: (vr(d, 4) if s else '0')
        order = [('K', 0), ('K', 1), ('K', 2), ('K', 3), ('K', 4), ('HK', 0), ('V', 0), ('V', 1), ('V', 2), ('V', 3), ('V', 4), ('HV', 0),
                 ('Q', 0), ('Q', 1), ('Q', 2), ('Q', 3), ('Q', 4)]
        for n, (sec, b) in enumerate(order):
            w = WR + (len(items) % 8) * 4
            so = {'Q': 0, 'K': 5120, 'V': 10240, 'HK': 5120, 'HV': 10240}[sec] + base
            if sec in ('HK', 'HV'): a, off = TH[win], so
            elif b < 4: a, off = TN[win], so + 40*b
            else: a, off = TR[win], so
            reads = [f'ds_read_b64_tr_b16 {ar(w,2)}, v{a} offset:{off}', f'ds_read_b64_tr_b16 {ar(w+2,2)}, v{a} offset:{off+2560}']
            W = ar(w, 4)
            if sec == 'K': mf = [f'{MF} {vr(KT(mb,b),4)}, {W}, {xf(mb)}, {C(KT(mb,b))}' for mb in range(2)]
            if sec == 'Q': mf = [f'{MF} {vr(QT(mb,b),4)}, {W}, {xf(mb)}, {C(QT(mb,b))}' for mb in range(2)]
            if sec == 'V': mf = [f'{MF} {vr(VV(b,mb),4)}, {xf(mb)}, {W}, {C(VV(b,mb))}' for mb in range(2)]
            if sec == 'K' and b == 4: mf.append(f'{MF} {vr(HK4,4)}, {W}, {hf}, {C(HK4)}')
            if sec == 'V' and b == 4: mf.append(f'{MF} {vr(HV4,4)}, {hf}, {W}, {C(HV4)}')
            if sec == 'HK': mf = [f'{MF} {vr(HK,4)}, {W}, {hf}, {C(HK)}']
            if sec == 'HV': mf = [f'{MF} {vr(HV,4)}, {hf}, {W}, {C(HV)}']
            it = dict(reads=reads, tag=('w', s, n), need=[('x', kp)], mf=mf)
            if n == 0:
                def pre(s=s):
                    em.wait(vm=[('u', s)]); em('s_barrier')
                    if (s & 1) == 0: st.push(*xreads(s >> 1), tag=('x', s >> 1))
                    if s >= 1 and s - 2 + B_NS < 20: st.push(*unit(s - 2 + B_NS))
                it['pre'] = pre
                it['flush'] = True
            items.append(it)
    st.run(items)
    stamp(em, cfg, 2)
    pk = lambda d, a: em(f'v_cvt_pk_bf16_f32 v{d}, v{a}, v{a+1}')
    def packK(mb):
        k4 = KT(mb, 4)
        pk(k4, k4); pk(k4+1, k4+2)
        for h in range(4):
            k = KT(mb, h); pk(k, k); pk(k+1, k+2)
            em(f'v_mov_b32 v{k+2}, v{k4}\n v_mov_b32 v{k+3}, v{k4+1}')
    def packQ(mb):
        q4 = QT(mb, 4)
        pk(q4, q4); pk(q4+1, q4+2)
        for h in range(4):
            q = QT(mb, h); pk(q, q); pk(q+1, q+2)
            em(f'v_cndmask_b32 v{q+2}, 0, v{q4}, {sr(S_ROWM+2*h,2)}\n v_cndmask_b32 v{q+3}, 0, v{q4+1}, {sr(S_ROWM+2*h,2)}')
    for hh in (HK, HK4, HV, HV4): pk(hh, hh); pk(hh+1, hh+2)
    em.lds(f'ds_write_b64 v27, {vr(HK,2)}'); em.lds(f'ds_write_b64 v27, {vr(HV,2)} offset:2560')
    em.lds(f'ds_write_b64 v30, {vr(HK4,2)} offset:2048'); em.lds(f'ds_write_b64 v30, {vr(HV4,2)} offset:{2560+2048}')
    packK(1)
    for b in range(5): em.lds(f'ds_write_b64 v26, {vr(KT(1,b),2)} offset:{b*512}')
    for b in range(5):
        v = VV(b, 0)
        pk(v+3, v+2); pk(v+2, v); pk(v+4, v+4); pk(v+5, v+6)
        em.lds(f'ds_write_b64 v26, {vr(v+4,2)} offset:{2560 + b*512}')
    packK(0); packQ(1)
    em.wait_all(vm=False); em('s_barrier')
    for h in range(4):
        em.lds(f'ds_read_b64 {ar(KPREV+4*h,2)}, v28 offset:{h*512}', 'kp'); em.lds(f'ds_read_b64 {ar(KPREV+4*h+2,2)}, v28 offset:2048', 'kp')
    for b in range(5): em.lds(f'ds_read_b64 {vr(VV(b,0),2)}, v28 offset:{2560 + b*512}', 'vp')
    for h in range(4):
        u = 4 + h
        em(f'{MF} {vr(SS(u),4)}, {vr(KT(0,h),4)}, {vr(QT(1,h),4)}, {vr(CPREV,4)}')
        em(f'{MF} {vr(SS(u)+4,4)}, {vr(KT(1,h),4)}, {vr(QT(1,h),4)}, {vr(CCUR,4)}')
    packQ(0)
    for h in range(4): em(f'{MF} {vr(SS(h)+4,4)}, {vr(KT(0,h),4)}, {vr(QT(0,h),4)}, {vr(CCUR,4)}')
    em.wait(lg=['kp'])
    for h in range(4): em(f'{MF} {vr(SS(h),4)}, {ar(KPREV+4*h,4)}, {vr(QT(0,h),4)}, {vr(CPREV0,4)}')
    em(f's_mov_b32 s41, {f32(20 ** -0.5 * LOG2E):#x}')
    def reduce4(regs, op, tmp):
        a, b, c, d = regs
        em(f'v_permlane16_swap_b32 v{a}, v{b}\n v_permlane16_swap_b32 v{c}, v{d}\n {op} v{a}, v{a}, v{b}\n {op} v{c}, v{c}, v{d}\n v_permlane32_swap_b32 v{a}, v{c}\n {op} v{tmp}, v{a}, v{c}')
    def bcast4(src, regs):
        a, b, c, d = regs
        em(f'v_mov_b32 v{a}, v{src}\n v_mov_b32 v{c}, v{src}\n v_permlane32_swap_b32 v{a}, v{c}\n v_mov_b32 v{b}, v{a}\n v_mov_b32 v{d}, v{c}\n v_permlane16_swap_b32 v{a}, v{b}\n v_permlane16_swap_b32 v{c}, v{d}')
    for grp in (1, 0):
        us = [4*grp + h for h in range(4)]
        for u in us:
            S = SS(u)
            em(f'v_max3_f32 v{S}, v{S}, v{S+1}, v{S+4}\n v_max3_f32 v{S+2}, v{S+2}, v{S+3}, v{S+6}\n v_max_f32 v{S}, v{S}, v{S+5}\n v_max_f32 v{S+1}, v{S+2}, v{S+7}\n v_max_f32 v{S+2}, v{S}, v{S+1}')
        R = [SS(u) + 2 for u in us]; T = 2 + grp
        reduce4(R, 'v_max_f32', T); em(f'v_mul_f32 v{T}, s41, v{T}'); bcast4(T, R)
        for u in us:
            S = SS(u)
            em(f'v_fma_f32 v{S}, v{S}, s41, -v{S+2}\n v_fma_f32 v{S+1}, v{S+1}, s41, -v{S+2}')
        for u in us:
            S = SS(u); em(f'v_exp_f32 v{S}, v{S}\n v_exp_f32 v{S+1}, v{S+1}')
        for u in us:
            S = SS(u); em(f'v_add_f32 v{S+2}, v{S}, v{S+1}')
        reduce4(R, 'v_add_f32', T); em(f'v_rcp_f32 v{T}, v{T}'); bcast4(T, R)
        for u in us:
            S = SS(u)
            em(f'v_mul_f32 v{S}, v{S}, v{S+2}\n v_mul_f32 v{S+1}, v{S+1}, v{S+2}\n v_cvt_pk_bf16_f32 v{S}, v{S}, v{S+1}')
            for j in range(4): em(f'v_perm_b32 v{S+4+j}, v{S}, v{S}, v{SEL+j}')
        if grp == 0: em.wait(lg=['vp'])
        for h, u in enumerate(us):
            em(f'{MF} {vr(QT(grp,h),4)}, {vr(VV(h,0)+2*grp,4)}, {vr(SS(u)+4,4)}, 0')
            em(f'{MF} {vr(KT(grp,h),4)}, {vr(VV(4,0)+2*grp,4)}, {vr(SS(u)+4,4)}, 0')
    for grp in (1, 0):
        O = SS(4*grp) ;
        for h in range(4): pk(O + 2*h, QT(grp,h)); pk(O + 2*h + 1, QT(grp,h) + 2)
        for h in range(4):
            em(f's_mov_b64 exec, {sr(S_ROWM+2*h,2)}'); pk(O + 8, KT(grp,h)); pk(O + 9, KT(grp,h) + 2)
        em('s_mov_b64 exec, -1')
        ostore(em, O, grp, 29, 31)
    stamp(em, cfg, 3)

def ostore_addr(em, dmain, drem):
    em(f'''s_lshl_b32 s41, s{S_BR}, 7
        s_lshl_b32 s42, s{S_RT}, 3
        s_add_u32 s41, s41, s42
        s_lshl_b32 s42, s{S_WAVE}, 1
        s_add_u32 s41, s41, s42
        s_mul_i32 s41, s41, 20480
        s_lshl_b32 s42, s{S_GRP}, 11
        s_add_u32 s42, s42, s41
        v_lshlrev_b32 v1, 4, v0
        v_add_u32 v{dmain}, s42, v1
        s_lshr_b32 s42, s{S_GRP}, 1
        s_lshl_b32 s42, s42, 10
        s_add_u32 s41, s41, s42
        s_and_b32 s42, s{S_GRP}, 1
        s_lshl_b32 s42, s42, 3
        s_add_u32 s41, s41, s42
        s_add_u32 s41, s41, {16*1024 + WS_O}
        v_add_u32 v{drem}, s41, v1''')

def ostore(em, O, mb, dmain, drem):
    em(f's_mov_b32 s42, {mb*20480}')
    em.vmem(f'buffer_store_dwordx4 {vr(O,4)}, v{dmain}, {sr(SRD_WS,4)}, s42 offen')
    em.vmem(f'buffer_store_dwordx4 {vr(O+4,4)}, v{dmain}, {sr(SRD_WS,4)}, s42 offen offset:1024')
    em.vmem(f'buffer_store_dwordx2 {vr(O+8,2)}, v{drem}, {sr(SRD_WS,4)}, s42 offen')

A_NS = 4; A_SLOT = 20480; A_XBASE = A_NS * A_SLOT; A_XS = 3
A_U16 = A_XBASE + 8192
def emit_A(em, cfg):
    KK = lambda b, mb: 32 + b*8 + mb*4
    VV = lambda b, mb: 72 + b*8 + mb*4
    QT = lambda mb, b: 112 + (mb*5 + b)*4
    RES = 152
    ONEH, SELR, CEPS, NEGC = 208, 228, 232, 236
    XB, WR, PART = 0, 160, 192
    VW = 11
    em(f's_mul_i32 s47, s{S_GRP}, 160')
    for j in range(5): wpattern(em, VW + j, j*64, 3840, 's47')
    em(f's_mul_i32 s48, s{S_WAVE}, 5120')
    em(f's_mul_i32 s58, s{S_WAVE}, {A_XS*4096}\n s_add_u32 s58, s58, {A_XBASE}')
    em(f's_lshr_b32 s41, s{S_WAVE}, 1\n s_mul_i32 s41, s41, 122880\n s_and_b32 s42, s{S_WAVE}, 1\n s_mul_i32 s42, s42, 1280\n s_add_u32 s49, s41, s42\n s_add_u32 s49, s49, 1280')
    em(f's_mul_i32 s44, s{S_ROT}, 245760\n s_lshl_b32 s45, s{S_ROT}, 7')
    em(f's_lshr_b32 s41, s{S_WAVE}, 1\n s_add_u32 s41, s41, s{S_ROT}\n s_cmp_ge_u32 s41, 10\n s_cselect_b32 s42, 10, 0\n s_sub_u32 s41, s41, s42\n s_mul_i32 s50, s41, 245760\n s_and_b32 s42, s{S_WAVE}, 1\n s_mul_i32 s51, s42, 122880')
    em('s_waitcnt lgkmcnt(0)'); em.lg = []
    srd(em, SRD_X, 4, 5, 2621440); srd(em, SRD_W, 6, 7, 2457600)
    def unit(u):
        fs = []; sl = u % A_NS
        if u < 10:
            for o in range(4):
                fs.append(lambda o=o: em(f's_add_u32 m0, s58, {(u % A_XS)*4096 + o*1024}'))
                fs.append(lambda o=o: em.vmem(f'buffer_load_dwordx4 v{4+o}, {sr(SRD_X,4)}, s45 offen lds', ('u', u)))
            fs.append(lambda: em('s_add_u32 s46, s44, s49'))
        else:
            fs.append(lambda: em('s_add_u32 s46, s50, s51'))
        for j in range(5):
            fs.append(lambda j=j: em(f's_add_u32 m0, s48, {sl*A_SLOT + j*1024}'))
            fs.append(lambda j=j: em.vmem(f'buffer_load_dwordx4 v{VW+j}, {sr(SRD_W,4)}, s46 offen lds', ('u', u)))
        if u < 9:
            fs.append(lambda: em('s_add_u32 s44, s44, 245760\n s_cmp_eq_u32 s44, 2457600\n s_cselect_b32 s44, 0, s44'))
            fs.append(lambda: em('s_add_u32 s45, s45, 128\n s_cmp_eq_u32 s45, 1280\n s_cselect_b32 s45, 0, s45'))
        if u >= 10:
            fs.append(lambda: em('s_add_u32 s50, s50, 491520\n s_cmp_ge_u32 s50, 2457600\n s_cselect_b32 s41, 2457600, 0\n s_sub_u32 s50, s50, s41'))
        return fs
    for u in range(A_NS - 1):
        for f in unit(u): f()
    stamp(em, cfg, 1)
    srd(em, SRD_WS, 14, 15, WS_BYTES); srd(em, SRD_DBG, 12, 13, 256)
    masks(em)
    xread_addr(em, 16, 17, 's58')
    tr_addr(em, 20, 21)
    em(f'v_add_u32 v22, {2*A_SLOT}, v20\n v_add_u32 v23, {2*A_SLOT}, v21')
    XA, TN, TR = 16, (20, 22), (21, 23)
    em('v_and_b32 v1, 15, v0\n v_lshrrev_b32 v2, 4, v0\n v_mov_b32 v9, 0x3f803f80')
    for h, col in enumerate((0, 4, 8, 12, 1)):
        em(f'v_cmp_eq_u32 vcc, {col}, v1')
        for j in range(4): em(f'v_cndmask_b32 v{ONEH+4*h+j}, 0, v9, vcc')
    em('v_mov_b32 v9, 0x3f80\n v_mov_b32 v10, 0x3f800000')
    for j in range(4):
        em(f'v_cmp_eq_u32 vcc, {2*j}, v1\n v_cndmask_b32 v{SELR+j}, 0, v9, vcc\n v_cmp_eq_u32 vcc, {2*j+1}, v1\n v_cndmask_b32 v{SELR+j}, v{SELR+j}, v10, vcc')
    for j in range(4): em(f'v_mov_b32 v{CEPS+j}, {f32(EPS):#x}')
    em(f'v_mov_b32 v{NEGC}, {f32(-EPS*LOG2E):#x}')
    em('''v_mul_u32_u24 v3, 5, v1
        v_add_u32 v24, v3, v2
        v_add_u32 v25, 4, v3
        v_and_b32 v3, 3, v1
        v_mul_u32_u24 v3, 5, v3
        v_add_u32 v26, v3, v2
        v_add_u32 v26, 80, v26
        v_mul_u32_u24 v9, 105, v2
        v_add_u32 v27, v9, v3
        v_add_u32 v27, 84, v27
        v_lshrrev_b32 v3, 2, v1
        v_mul_u32_u24 v3, 105, v3
        v_add_u32 v3, v3, v2
        v_add_u32 v3, 100, v3
        v_add_u32 v9, 104, v9
        v_cmp_eq_u32 vcc, 1, v1
        v_cndmask_b32 v28, v3, v9, vcc''')
    em(f'''v_lshlrev_b32 v18, 3, v24
        v_add_u32 v18, {A_U16}, v18
        v_lshlrev_b32 v8, 3, v25
        v_add_u32 v8, {A_U16}, v8
        v_lshrrev_b32 v3, 2, v1
        v_add_u32 v3, 16, v3
        v_and_b32 v9, 3, v1
        v_cmp_eq_u32 vcc, 0, v9
        v_cndmask_b32 v3, 20, v3, vcc
        v_mul_u32_u24 v3, 5, v3
        v_add_u32 v19, v3, v2
        v_lshlrev_b32 v19, 3, v19
        v_add_u32 v19, {A_U16}, v19
        v_lshlrev_b32 v10, 3, v3
        v_add_u32 v10, {A_U16 + 32}, v10''')
    A1LO, A1HI, A2LO, A2HI = 18, 8, 19, 10
    for d in range(24, 29): em(f'v_lshlrev_b32 v{d}, 4, v{d}\n v_add_u32 v{d}, s58, v{d}')
    em('s_mov_b32 s76, 0x00f0000f\n s_mov_b32 s77, 0xf0000f00')
    em('s_mov_b32 s78, 0x11131113\n s_mov_b32 s79, 0x11131113')
    em(f'''s_lshl_b32 s41, s{S_WAVE}, 6
        v_add_u32 v3, s41, v0
        v_lshlrev_b32 v240, 4, v3
        v_add_u32 v240, {A_XBASE}, v240
        s_lshl_b32 s41, s{S_GRP}, 4
        s_add_u32 s42, s41, s{S_RT}
        s_lshl_b32 s42, s42, 12
        s_add_u32 s42, s42, {WS_PART}
        v_lshlrev_b32 v241, 3, v3
        v_add_u32 v241, s42, v241
        s_lshl_b32 s41, s41, 12
        s_lshl_b32 s42, s{S_WAVE}, 8
        s_add_u32 s41, s41, s42
        s_add_u32 s41, s41, {WS_PART}
        v_lshlrev_b32 v242, 12, v2
        v_lshl_add_u32 v242, v1, 4, v242
        v_add_u32 v242, s41, v242
        s_add_u32 s42, s42, {A_U16}
        v_lshlrev_b32 v243, 4, v1
        v_lshl_add_u32 v243, v2, 3, v243
        v_add_u32 v243, s42, v243
        s_lshl_b32 s52, s{S_GRP}, 5
        v_mov_b32 v244, 0
        v_mov_b32 v245, 1''')
    ostore_addr(em, 29, 31)

    st = Stream(em, cfg)
    def xreads(kp):
        return [(lambda ks=ks, mb=mb: em.lds(f'ds_read_b128 {ar(XB + kp*16 + ks*8 + mb*4, 4)}, v{XA+ks} offset:{(kp % A_XS)*4096 + mb*2048}', ('x', kp))) for ks in range(2) for mb in range(2)]
    def mkitem(idx, slot, img, b, mf, need):
        w = WR + (idx % 8) * 4
        win = 1 if slot >= 2 else 0
        off = (slot - 2*win) * A_SLOT + img * 5120
        a = TN[win] if b < 4 else TR[win]
        if b < 4: off += 40*b
        W = ar(w, 4)
        return dict(reads=[f'ds_read_b64_tr_b16 {ar(w,2)}, v{a} offset:{off}', f'ds_read_b64_tr_b16 {ar(w+2,2)}, v{a} offset:{off+2560}'],
                    tag=('w', idx), need=need, mf=[m.replace('@W', W) for m in mf])
    items = []
    for kp in range(10):
        for ks in range(2):
            for sec in range(2):
                for b in range(5):
                    D = KK if sec == 0 else VV
                    first = kp == 0 and ks == 0
                    mf = [f'{MF} {vr(D(b,mb),4)}, {ar(XB + kp*16 + ks*8 + mb*4, 4)}, @W, {(vr(CEPS,4) if sec == 0 else "0") if first else vr(D(b,mb),4)}' for mb in range(2)]
                    it = mkitem(len(items), kp % A_NS, ks*2 + sec, b, mf, [('x', kp)])
                    if ks == 0 and sec == 0 and b == 0:
                        def pre(kp=kp):
                            em.wait(vm=[('u', kp)]); em('s_barrier')
                            st.push(*xreads(kp), tag=('x', kp))
                            if kp >= 1: st.push(*unit(kp + A_NS - 2))
                        it['pre'] = pre; it['flush'] = True
                    items.append(it)
    st.run(items)
    stamp(em, cfg, 2)
    pk = lambda d, a: em(f'v_cvt_pk_bf16_f32 v{d}, v{a}, v{a+1}')
    em(f's_mov_b32 s53, {f32(LOG2E):#x}\n s_mov_b32 s54, {f32(EPS):#x}')
    def phi(regs, tmp):
        for i in range(0, len(regs), 8):
            ch = regs[i:i+8]
            for j, r in enumerate(ch): em(f'v_fma_f32 v{tmp+j}, v{r}, s53, v{NEGC}')
            for j, r in enumerate(ch): em(f'v_exp_f32 v{tmp+j}, v{tmp+j} clamp\n v_max_f32 v{r}, s54, v{r}')
            for j, r in enumerate(ch): em(f'v_add_f32 v{r}, v{r}, v{tmp+j}')
    em('s_barrier')
    for f in unit(12) + unit(13): f()
    for b in range(5):
        v = VV(b, 0)
        for j in range(4): pk(v + j, v + 2*j)
    for b in (4, 0, 1, 2, 3):
        k = KK(b, 0)
        phi(list(range(k, k + 8)), 246)
        for j in range(4): pk(k + j, k + 2*j)
    Kop = lambda b: vr(KK(b, 0), 4); Vop = lambda b: vr(VV(b, 0), 4)
    rD = lambda h: RES + 4*h; rY = lambda h: RES + 16 + 4*h; rYp = lambda h: RES + 32 + 4*h; rX3 = RES + 48; rZ = RES + 52
    em(f'{MF} {vr(rX3,4)}, {Kop(4)}, {Vop(4)}, 0')
    em(f'{MF} {vr(rZ,4)}, {Kop(4)}, {vr(ONEH+16,4)}, 0')
    for h in range(4): em(f'{MF} {vr(rY(h),4)}, {Kop(4)}, {Vop(h)}, 0')
    for h in range(4):
        em(f'{MF} {vr(rD(h),4)}, {Kop(h)}, {Vop(h)}, 0')
        em(f'{MF} {vr(rYp(h),4)}, {Kop(h)}, {Vop(4)}, 0')
        em(f'{MF} {vr(rZ,4)}, {Kop(h)}, {vr(ONEH+4*h,4)}, {vr(rZ,4)}')
    em('s_mov_b64 exec, s[76:77]'); em.lds(f'ds_write_b128 v27, {vr(rX3,4)}')
    for h in range(4):
        em(f's_mov_b64 exec, {sr(S_ROWM+2*h,2)}'); em.lds(f'ds_write_b128 v25, {vr(rY(h),4)} offset:{1680*h}')
    em('s_mov_b64 exec, -1')
    for h in range(4): em.lds(f'ds_write_b128 v24, {vr(rD(h),4)} offset:{1680*h}')
    for h in range(4):
        em(f's_mov_b64 exec, {sr(S_COLM+2*h,2)}'); em.lds(f'ds_write_b128 v26, {vr(rYp(h),4)} offset:{1680*h}')
    em('s_mov_b64 exec, s[78:79]'); em.lds(f'ds_write_b128 v28, {vr(rZ,4)}')
    em('s_mov_b64 exec, -1')
    em.wait_all(vm=False); em('s_barrier')
    T = RES
    for rnd in range(2):
        for w in range(4): em.lds(f'ds_read_b128 {vr(T + rnd*16 + w*4, 4)}, v240 offset:{w*A_XS*4096 + rnd*4096}', ('r', rnd))
    for rnd in range(2):
        em.wait(lg=[('r', rnd)])
        b = T + rnd*16
        for j in range(4): em(f'v_add_f32 v{b+j}, v{b+j}, v{b+4+j}\n v_add_f32 v{b+8+j}, v{b+8+j}, v{b+12+j}')
        for j in range(4): em(f'v_add_f32 v{b+j}, v{b+j}, v{b+8+j}')
        pk(b, b); pk(b+1, b+2)
        em.vmem(f'buffer_store_dwordx2 {vr(b,2)}, v241, {sr(SRD_WS,4)}, 0 offen offset:{rnd*2048} sc1', 'pst')
    stamp(em, cfg, 3)
    items = []
    for U in range(5):
        u = 10 + U
        for q in range(4):
            kp, ks = 2*U + (q >> 1), q & 1
            for b in range(5):
                first = U == 0 and q == 0
                mf = [f'{MF} {vr(QT(mb,b),4)}, @W, {ar(XB + kp*16 + ks*8 + mb*4, 4)}, {vr(CEPS,4) if first else vr(QT(mb,b),4)}' for mb in range(2)]
                it = mkitem(len(items), u % A_NS, q, b, mf, [])
                if q == 0 and b == 0:
                    def pre(u=u):
                        sig = u == cfg.sig_unit + 1
                        em.wait(vm=[('u', u)] + (['pst'] if sig else [])); em('s_barrier')
                        if sig:
                            em(f's_cmp_eq_u32 s{S_WAVE}, 0\n s_cbranch_scc0 LA_nosig\n s_mov_b64 exec, 1')
                            em(f'buffer_atomic_add v245, v244, {sr(SRD_DBG,4)}, s52 offen sc1\n s_mov_b64 exec, -1\nLA_nosig:')
                        if u == 12: st.push(*unit(14))
                        if u == cfg.poll_unit: poll_and_load()
                    it['pre'] = pre
                items.append(it)
    def poll_and_load():
        while st.fill: st.fill.pop(0)()
        em(f's_mov_b32 s55, 0\nLA_poll:\n buffer_load_dword v246, v244, {sr(SRD_DBG,4)}, s52 offen sc1\n s_waitcnt vmcnt(0)\n v_readfirstlane_b32 s41, v246\n s_cmp_ge_u32 s41, 16\n s_cbranch_scc1 LA_go\n s_sleep 1\n s_add_u32 s55, s55, 1\n s_cmp_lt_u32 s55, 0x40000\n s_cbranch_scc1 LA_poll\nLA_go:')
        em.vm = []
        for i in range(4):
            for q in range(4):
                st.push(lambda i=i, q=q: (em(f's_mov_b32 s41, {q*16384 + i*1024}'), em.vmem(f'buffer_load_dwordx4 {ar(PART + (i*4+q)*4, 4)}, v242, {sr(SRD_WS,4)}, s41 offen sc1', ('p', i))))
    st.run(items)
    stamp(em, cfg, 4)
    def packQ(mb):
        q4 = QT(mb, 4)
        phi(list(range(q4, q4 + 4)), 246)
        pk(q4, q4); pk(q4+1, q4+2)
        for h in range(4):
            q = QT(mb, h)
            if h % 2 == 0: phi(list(range(q, q + 8)), 246)
            pk(q, q); pk(q+1, q+2)
            em(f'v_cndmask_b32 v{q+2}, 0, v{q4}, {sr(S_ROWM+2*h,2)}\n v_cndmask_b32 v{q+3}, 0, v{q4+1}, {sr(S_ROWM+2*h,2)}')
    packQ(0)
    RD = 184
    for i in range(4):
        em.wait(vm=[('p', i)])
        for q in range(4): em(f'{MF} {vr(RD+4*i,4)}, {vr(SELR,4)}, {ar(PART + (i*4+q)*4, 4)}, {vr(RD+4*i,4) if q else "0"}')
    for i in range(4): pk(RD+4*i, RD+4*i); pk(RD+4*i+1, RD+4*i+2)
    em('s_mov_b64 exec, 0xffffffff')
    for i in range(4): em.lds(f'ds_write_b64 v243, {vr(RD+4*i,2)} offset:{i*1024}')
    em('s_mov_b64 exec, -1')
    em.wait_all(vm=False); em('s_barrier')
    OP = 152
    for h in range(4):
        em.lds(f'ds_read_b64 {vr(OP+8*h,2)}, v{A1LO} offset:{840*h}', 'op'); em.lds(f'ds_read_b64 {vr(OP+8*h+2,2)}, v{A1HI} offset:{840*h}', 'op')
        em.lds(f'ds_read_b64 {vr(OP+8*h+4,2)}, v{A2LO} offset:{840*h}', 'op'); em.lds(f'ds_read_b64 {vr(OP+8*h+6,2)}, v{A2HI} offset:{840*h}', 'op')
    packQ(1)
    em.wait(lg=['op'])
    R1 = lambda mb, h: 32 + (mb*4 + h)*8
    for mb in range(2):
        for h in range(4):
            em(f'{MF} {vr(R1(mb,h),4)}, {vr(OP+8*h,4)}, {vr(QT(mb,h),4)}, 0')
            em(f'{MF} {vr(R1(mb,h)+4,4)}, {vr(OP+8*h+4,4)}, {vr(QT(mb,h),4)}, 0')
    for mb in range(2):
        O = 184 + mb*12
        for h in range(4): r = R1(mb, h); em(f'v_add_f32 v{r+5}, s54, v{r+5}')
        for h in range(4): r = R1(mb, h); em(f'v_rcp_f32 v{r+5}, v{r+5}')
        for h in range(4):
            r = R1(mb, h)
            for j in range(5): em(f'v_mul_f32 v{r+j}, v{r+j}, v{r+5}')
            pk(O + 2*h, r); pk(O + 2*h + 1, r + 2)
        em(f'v_cvt_pk_bf16_f32 v{O+8}, v{R1(mb,0)+4}, v{R1(mb,1)+4}\n v_cvt_pk_bf16_f32 v{O+9}, v{R1(mb,2)+4}, v{R1(mb,3)+4}')
        ostore(em, O, mb, 29, 31)
    stamp(em, cfg, 5)

def kernel1(cfg):
    em = Em()
    k1_setup(em, cfg)
    em(f's_cmp_eq_u32 s{S_BR}, 0\n s_cbranch_scc1 L1_A')
    lg0 = list(em.lg)
    emit_B(em, cfg); store_stamps(em, cfg, 4, 0)
    em('s_endpgm\nL1_A:')
    em.vm = []; em.lg = lg0
    emit_A(em, cfg); store_stamps(em, cfg, 6, 0)
    em('L1_end:\n s_endpgm')
    return em.L

K2_OUT = 102400
K2_LDS = K2_OUT + 4 * 5632
def kernel2(cfg):
    em = Em()
    em('s_cmp_ge_u32 s2, 256\n s_cbranch_scc1 L2_end')
    if cfg.stamps: em('s_memrealtime s[96:97]')
    stamp(em, cfg, 0)
    em('s_load_dwordx2 s[4:5], s[0:1], 16\n s_load_dwordx4 s[8:11], s[0:1], 40\n s_load_dwordx2 s[14:15], s[0:1], 64')
    em(f'''s_and_b32 s41, s2, 7
        s_lshr_b32 s42, s2, 3
        s_lshr_b32 s{S_BR}, s41, 2
        s_and_b32 s41, s41, 3
        s_lshl_b32 s41, s41, 2
        s_and_b32 s43, s42, 3
        s_add_u32 s{S_RT}, s41, s43
        s_lshr_b32 s{S_GRP}, s42, 2
        s_add_u32 s{S_ROT}, s43, s{S_GRP}
        s_and_b32 s{S_ROT}, s{S_ROT}, 3''')
    if not cfg.k2rot: em(f's_mov_b32 s{S_ROT}, 0')
    em(f'v_lshrrev_b32 v1, 6, v0\n v_and_b32 v0, 63, v0\n v_readfirstlane_b32 s{S_WAVE}, v1')
    em(f's_mul_i32 s47, s{S_GRP}, 160')
    for j in range(5): wpattern(em, 11 + j, j*64, 1280, 's47', 'omain')
    em(f's_cmp_eq_u32 s{S_BR}, 1\n s_cselect_b64 vcc, -1, 0')
    for j in range(5): wpattern(em, 16 + j, j*64, 1280, 's47', 'orem')
    em(f'''s_lshl_b32 s41, s{S_BR}, 7
        s_lshl_b32 s42, s{S_RT}, 3
        s_add_u32 s41, s41, s42
        s_lshl_b32 s42, s{S_WAVE}, 1
        s_add_u32 s41, s41, s42
        s_mul_i32 s41, s41, 20480
        v_lshlrev_b32 v1, 4, v0
        v_add_u32 v4, s41, v1
        v_add_u32 v5, 20480, v4
        s_mul_i32 s48, s{S_WAVE}, 5120
        s_mul_i32 s49, s{S_WAVE}, 51200
        s_mul_i32 s50, s{S_WAVE}, 204800''')
    em('s_waitcnt lgkmcnt(0)'); em.lg = []
    em(f's_cmp_eq_u32 s{S_BR}, 0\n s_cselect_b32 s{SRD_W}, s4, s8\n s_cselect_b32 s{SRD_W+1}, s5, s9\n s_mov_b32 s{SRD_W+2}, 819200\n s_mov_b32 s{SRD_W+3}, 0x20000')
    srd(em, SRD_WS, 14, 15, WS_BYTES)
    XB, WR = 0, 160
    def unit(U):
        fs = []
        if U < 4:
            fs.append(lambda: em(f's_add_u32 s41, s{S_ROT}, {U}\n s_and_b32 s41, s41, 3\n s_mul_i32 s44, s41, 204800\n s_add_u32 s44, s44, s49\n s_lshl_b32 s45, s41, 12'))
        else:
            fs.append(lambda: em('s_mov_b32 s44, s50\n s_mov_b32 s45, 16384'))
        for j in range(5):
            fs.append(lambda j=j: em(f's_add_u32 m0, s48, {U*20480 + j*1024}'))
            fs.append(lambda j=j: em.vmem(f'buffer_load_dwordx4 v{(11 if U < 4 else 16)+j}, {sr(SRD_W,4)}, s44 offen lds', ('u', U)))
        for q in range(4):
            for mb in range(2):
                fs.append(lambda q=q, mb=mb: em.vmem(f'buffer_load_dwordx4 {ar(XB + (U*4+q)*8 + mb*4, 4)}, v{4+mb}, {sr(SRD_WS,4)}, s45 offen offset:{q*1024}', ('u', U)))
        return fs
    for U in range(4):
        for f in unit(U): f()
    stamp(em, cfg, 1)
    srd(em, SRD_X, 10, 11, 2048*1280*2)
    em('v_lshrrev_b32 v1, 2, v0\n v_mul_u32_u24 v1, 160, v1\n v_and_b32 v2, 3, v0\n v_lshl_add_u32 v30, v2, 3, v1\n v_add_u32 v31, 61440, v30')
    em(f's_mul_i32 s41, s{S_WAVE}, 5632\n s_add_u32 s41, s41, {K2_OUT}\n v_and_b32 v1, 15, v0\n v_mul_u32_u24 v1, 176, v1\n v_lshrrev_b32 v2, 4, v0\n v_lshl_add_u32 v1, v2, 3, v1\n v_add_u32 v22, s41, v1')
    em(f's_lshl_b32 s42, s{S_RT}, 7\n s_lshl_b32 s43, s{S_WAVE}, 5\n s_add_u32 s42, s42, s43\n s_mul_i32 s42, s42, 2560\n s_mul_i32 s43, s{S_BR}, 1280\n s_add_u32 s42, s42, s43\n s_add_u32 s42, s42, s47')
    for j in range(5):
        em(f'v_add_u32 v1, {j*64}, v0'); div10(em, 2, 3, 1, 23)
        em(f'v_mul_u32_u24 v1, 176, v2\n v_lshl_add_u32 v1, v3, 4, v1\n v_add_u32 v{24+j}, s41, v1')
        em(f'v_mul_u32_u24 v1, 2560, v2\n v_lshl_add_u32 v1, v3, 4, v1\n v_add_u32 v{6+j if j < 5 else 0}, s42, v1')
    ACC = lambda mb, b: 32 + (mb*5 + b)*4
    st = Stream(em, cfg); items = []
    for U in range(5):
        for q in range(4):
            s = U*4 + q
            for b in range(5):
                w = WR + (len(items) % 8)*4
                a, off = (30, s*5120) if s < 12 else (31, (s - 12)*5120)
                off += 32*b
                it = dict(reads=[f'ds_read_b64_tr_b16 {ar(w,2)}, v{a} offset:{off}', f'ds_read_b64_tr_b16 {ar(w+2,2)}, v{a} offset:{off+2560}'], tag=('w', len(items)),
                          mf=[f'{MF} {vr(ACC(mb,b),4)}, {ar(w,4)}, {ar(XB + s*8 + mb*4, 4)}, {vr(ACC(mb,b),4) if s else "0"}' for mb in range(2)])
                if q == 0 and b == 0:
                    def pre(U=U):
                        em.wait(vm=[('u', U)]); em('s_barrier')
                        if U == 0:
                            for f in unit(4): f()
                    it['pre'] = pre
                items.append(it)
    st.run(items)
    stamp(em, cfg, 2)
    for mb in range(2):
        for b in range(5):
            a = ACC(mb, b)
            em(f'v_cvt_pk_bf16_f32 v{a}, v{a}, v{a+1}\n v_cvt_pk_bf16_f32 v{a+1}, v{a+2}, v{a+3}')
            em.lds(f'ds_write_b64 v22, {vr(a,2)} offset:{mb*16*176 + b*32}')
    em.wait_all(vm=False)
    for j in range(5): em.lds(f'ds_read_b128 {vr(80+4*j,4)}, v{24+j}', ('o', j))
    for j in range(5):
        em.wait(lg=[('o', j)])
        em.vmem(f'buffer_store_dwordx4 {vr(80+4*j,4)}, v{6+j}, {sr(SRD_X,4)}, 0 offen')
    stamp(em, cfg, 3)
    store_stamps(em, cfg, 4, 1)
    em('L2_end:\n s_endpgm')
    return em.L

def kd(name, vgpr, accum):
    return f""".amdhsa_kernel {name}
  .amdhsa_next_free_vgpr {vgpr}
  .amdhsa_next_free_sgpr 102
  .amdhsa_accum_offset {accum}
  .amdhsa_group_segment_fixed_size 0
  .amdhsa_kernarg_size 72
  .amdhsa_user_sgpr_count 2
  .amdhsa_user_sgpr_kernarg_segment_ptr 1
  .amdhsa_system_sgpr_workgroup_id_x 1
.end_amdhsa_kernel"""

def build(cfg):
    k1, n1 = pad_hazards(kernel1(cfg)); k2, n2 = pad_hazards(kernel2(cfg))
    sys.stderr.write(f'k1 {len(k1)} lines ({n1} pad states), k2 {len(k2)} lines ({n2})\n')
    fmt = lambda L: '\n'.join(l if l.endswith(':') else '    ' + l for l in L)
    return f"""; linear-attention block (A) + dilated sliding-window block (B), concatenated. Generated by gen/gen.py.
; @launch kernel=qkv_attn_kernel grid=(256,1,1) block=(256,1,1) lds={B_LDS}
; @launch kernel=oproj_kernel grid=(256,1,1) block=(256,1,1) lds={K2_LDS}
.amdgcn_target "amdgcn-amd-amdhsa--gfx950"
.text
.globl qkv_attn_kernel
.p2align 8
.type qkv_attn_kernel,@function
qkv_attn_kernel:
{fmt(k1)}
.globl oproj_kernel
.p2align 8
.type oproj_kernel,@function
oproj_kernel:
{fmt(k2)}
.section .rodata,"a"
.p2align 6
{kd('qkv_attn_kernel', 512, 256)}
.p2align 6
{kd('oproj_kernel', 448, 256)}
"""

if __name__ == '__main__':
    cfg = Cfg()
    out = sys.argv[1]
    for kv in sys.argv[2:]:
        k, v = kv.split('='); setattr(cfg, k, type(getattr(cfg, k))(int(v)))
    open(out, 'w').write(build(cfg))
```

```python
import sys, struct
from asmlib import *

NAME = "concat_heads__linear_attn_block__sliding_local_dilated__prompt"
def f32(x): return struct.unpack('<I', struct.pack('<f', x))[0]
LOG2E = 1.4426950408889634
EPS = 1e-6
WS_O = 0
WS_PART = 0x600000
WS_STAMP = 0x700000
WS_BYTES = 0x800000
MF = 'v_mfma_f32_16x16x32_bf16'
SPIN = 0x8000

class Cfg:
    stamps = False
    lead = 5
    waitgrp = 2
    rot = True
    sentB = 7
    sentA = 3
    prio = 0
    remap = True
    nosent = False
    early = False
    dbgA = False
    trace = False
    lookB = 4
    noxr = False
    prioL = 0
    xlate = False
    map41 = False
    trace2 = False
    plain = False
    noprobe = False
    nox = False
    now = False

SRD_X, SRD_W, SRD_WO, SRD_WS, SRD_AUX, SRD_DBG, SRD_OUT = 24, 28, 32, 36, 40, 44, 48
S_WAVE, S_W4, S_RT, S_GRP, S_ROT, S_BR, S_RT2, S_CT = 52, 53, 54, 55, 56, 57, 58, 59
S_ROWM, S_COLM = 60, 68
S_STAMP = 82
T0, T1, T2, T3 = 76, 77, 78, 79

def stamp(em, cfg, i):
    if cfg.stamps:
        em(f's_memtime {sr(S_STAMP + 2*i, 2)}'); em.lg += ['stamp', 'stamp']

def trace(em, cfg, reg, idx):
    if cfg.trace:
        em(f's_memtime s[100:101]\n s_waitcnt lgkmcnt(0)\n v_writelane_b32 v{reg}, s100, {idx}'); em.lg = []

def trace2(em, cfg, idx):
    if cfg.trace2:
        em(f's_memtime s[100:101]\n s_waitcnt lgkmcnt(0)\n v_writelane_b32 v23, s100, {idx}'); em.lg = []

def srd(em, d, lo, nbytes):
    em(f's_mov_b32 s{d}, s{lo}\n s_mov_b32 s{d+1}, s{lo+1}\n s_mov_b32 s{d+2}, {nbytes}\n s_mov_b32 s{d+3}, 0x20000')
def srd_sel(em, d, loA, loB, nbytes):
    em(f's_cmp_eq_u32 s{S_BR}, 0\n s_cselect_b32 s{d}, s{loA}, s{loB}\n s_cselect_b32 s{d+1}, s{loA+1}, s{loB+1}\n s_mov_b32 s{d+2}, {nbytes}\n s_mov_b32 s{d+3}, 0x20000')

def div10(em, q, r, i, t):
    em(f'v_mul_u32_u24 v{q}, 6554, v{i}\n v_lshrrev_b32 v{q}, 16, v{q}\n v_mul_u32_u24 v{t}, 10, v{q}\n v_sub_u32 v{r}, v{i}, v{t}')

def masks(em, row=True, col=False):
    for h in range(4):
        m = 0xFFFF << (16*h)
        if row: em(f's_mov_b32 s{S_ROWM+2*h}, {m & 0xffffffff:#x}\n s_mov_b32 s{S_ROWM+2*h+1}, {m >> 32:#x}')
        c = 0x000F000F << (4*h)
        if col: em(f's_mov_b32 s{S_COLM+2*h}, {c:#x}\n s_mov_b32 s{S_COLM+2*h+1}, {c:#x}')

class Stream:
    def __init__(self, em, cfg): self.em = em; self.cfg = cfg; self.fill = []; self.ftag = {}
    def push(self, *fns, tag=None):
        self.fill.extend(fns); self.ftag.update({id(f): tag for f in fns})
    def issue_reads(self, it): return [(lambda t=t: self.em.lds(t, it['tag'])) for t in it['reads']]
    def run(self, items):
        em = self.em; lead = self.cfg.lead; wg = self.cfg.waitgrp; n = len(items)
        for j in range(min(lead, n)):
            if items[j].get('pre'): items[j]['pre']()
            while self.fill and items[j].get('flush'): self.fill.pop(0)()
            for f in self.issue_reads(items[j]): f()
        for i, it in enumerate(items):
            rd = []
            if i + lead < n:
                nx = items[i + lead]
                if nx.get('pre'): nx['pre']()
                rd = self.issue_reads(nx)
            if it.get('head'): it['head']()
            tags = list(it.get('need', [])) + [it['tag']]
            if i % wg == 0:
                for k in range(1, wg):
                    if i + k < n: tags += [items[i + k]['tag']] + list(items[i + k].get('need', []))
            while any(self.ftag.get(id(f)) in tags for f in self.fill): self.fill.pop(0)()
            em.wait(lg=tags)
            nm = len(it['mf'])
            for k, m in enumerate(it['mf']):
                em(m)
                slots = 2
                take = (len(rd) + (nm - k) - 1) // (nm - k)
                for _ in range(take): rd.pop(0)(); slots -= 1
                while slots > 0 and self.fill:
                    self.fill.pop(0)(); slots -= 1
        while self.fill: self.fill.pop(0)()

def wpattern(em, dst, s_i64, row_bytes, s_add, kind='qkv', t=(1, 2, 3, 30, 31)):
    a, q, r, x, y = t
    em(f'v_add_u32 v{a}, {s_i64}, v0'); div10(em, q, r, a, x)
    if kind == 'qkv':
        em(f'v_bfe_u32 v{a}, v{q}, 2, 2\n v_lshlrev_b32 v{a}, 3, v{a}\n v_lshrrev_b32 v{x}, 4, v{q}\n v_lshl_add_u32 v{a}, v{x}, 2, v{a}\n v_and_b32 v{x}, 3, v{q}\n v_add_u32 v{a}, v{a}, v{x}')
    elif kind == 'omain':
        em(f'v_lshrrev_b32 v{a}, 4, v{q}\n v_mul_u32_u24 v{a}, 20, v{a}\n v_and_b32 v{x}, 15, v{q}\n v_add_u32 v{a}, v{a}, v{x}')
    elif kind == 'oremB':
        em(f'v_bfe_u32 v{a}, v{q}, 2, 2\n v_mul_u32_u24 v{a}, 20, v{a}\n v_and_b32 v{x}, 3, v{q}\n v_add_u32 v{a}, v{a}, v{x}\n v_lshrrev_b32 v{x}, 4, v{q}\n v_mul_u32_u24 v{x}, 80, v{x}\n v_add3_u32 v{a}, v{a}, v{x}, 16')
    elif kind == 'oremA':
        em(f'v_and_b32 v{a}, 3, v{q}\n v_mul_u32_u24 v{a}, 20, v{a}\n v_bfe_u32 v{x}, v{q}, 2, 2\n v_add_u32 v{a}, v{a}, v{x}\n v_lshrrev_b32 v{x}, 4, v{q}\n v_mul_u32_u24 v{x}, 80, v{x}\n v_add3_u32 v{a}, v{a}, v{x}, 16')
    em(f'v_mul_u32_u24 v{a}, {row_bytes}, v{a}\n v_lshl_add_u32 v{a}, v{r}, 4, v{a}\n v_add_u32 v{dst}, {s_add}, v{a}')

def xdma_addr(em, d, halo=None):
    em(f'''s_lshl_b32 s{T0}, s{S_RT}, 7
        s_lshl_b32 s{T1}, s{S_W4}, 5
        s_add_u32 s{T1}, s{T1}, s{T0}
        s_mul_i32 s{T1}, s{T1}, 1280
        v_lshrrev_b32 v1, 3, v0
        v_and_b32 v2, 7, v0
        v_xor_b32 v2, v2, v1
        v_mul_u32_u24 v1, 1280, v1
        v_lshl_add_u32 v1, v2, 4, v1
        v_add_u32 v{d}, s{T1}, v1
        v_add_u32 v{d+1}, 10240, v{d}
        v_add_u32 v{d+2}, 20480, v{d}
        v_add_u32 v{d+3}, 30720, v{d}''')
    if halo is not None:
        em(f's_mul_i32 s{T0}, s{T0}, 1280\n s_sub_u32 s{T0}, s{T0}, 20480\n v_add_u32 v{halo}, s{T0}, v1')

def xread_addr(em, d0, d1, s_base):
    em(f'''v_and_b32 v1, 15, v0
        v_lshrrev_b32 v2, 4, v0
        v_and_b32 v3, 7, v0
        v_xor_b32 v2, v2, v3
        v_lshlrev_b32 v1, 7, v1
        v_lshl_add_u32 v1, v2, 4, v1
        v_add_u32 v{d0}, {s_base}, v1
        v_xor_b32 v{d1}, 64, v{d0}''')

def tr_addr(em, dn, dr=None):
    em(f'v_lshrrev_b32 v1, 2, v0\n v_mul_u32_u24 v1, 160, v1\n v_and_b32 v2, 3, v0\n v_lshl_add_u32 v{dn}, v2, 3, v1')
    if dr is not None: em(f'v_mul_u32_u24 v2, 40, v2\n v_add3_u32 v{dr}, v1, v2, 32')

def ostore_addr(em, dmain, drem):
    em(f'''s_lshl_b32 s{T0}, s{S_BR}, 7
        s_lshl_b32 s{T1}, s{S_RT}, 3
        s_add_u32 s{T0}, s{T0}, s{T1}
        s_lshl_b32 s{T1}, s{S_W4}, 1
        s_add_u32 s{T0}, s{T0}, s{T1}
        s_mul_i32 s{T0}, s{T0}, 20480
        s_lshl_b32 s{T1}, s{S_GRP}, 11
        s_add_u32 s{T1}, s{T1}, s{T0}
        v_lshlrev_b32 v1, 4, v0
        v_add_u32 v{dmain}, s{T1}, v1
        s_lshr_b32 s{T1}, s{S_GRP}, 1
        s_lshl_b32 s{T1}, s{T1}, 10
        s_add_u32 s{T0}, s{T0}, s{T1}
        s_and_b32 s{T1}, s{S_GRP}, 1
        s_lshl_b32 s{T1}, s{T1}, 3
        s_add_u32 s{T0}, s{T0}, s{T1}
        s_add_u32 s{T0}, s{T0}, {16*1024 + WS_O}
        v_add_u32 v{drem}, s{T0}, v1''')

PLAIN = False
def ostore(em, o0, o1, o2, mb, dmain, drem, tag=None):
    so = 's23' if mb else '0'
    fl = '' if (PLAIN and tag is None) else ' sc1'
    em.vmem(f'buffer_store_dwordx4 {vr(o0,4)}, v{dmain}, {sr(SRD_WS,4)}, {so} offen{fl}', tag)
    em.vmem(f'buffer_store_dwordx4 {vr(o1,4)}, v{dmain}, {sr(SRD_WS,4)}, {so} offen offset:1024{fl}', tag)
    em.vmem(f'buffer_store_dwordx2 {vr(o2,2)}, v{drem}, {sr(SRD_WS,4)}, {so} offen{fl}', tag)

def wo_patterns(em, d, br):
    em(f's_mul_i32 s{T2}, s{S_CT}, 160')
    for j in range(5): wpattern(em, d + j, j*64, 1280, f's{T2}', 'omain')
    for j in range(5): wpattern(em, d + 5 + j, j*64, 1280, f's{T2}', 'oremB' if br else 'oremA')

def wo_unit(em, U, base, d):
    if U < 4: em(f's_add_u32 s{T0}, s21, {U*204800}')
    else: em(f's_mov_b32 s{T0}, s22')
    for j in range(5):
        em(f's_add_u32 m0, s20, {base + j*1024}')
        em.vmem(f'buffer_load_dwordx4 v{d + (0 if U < 4 else 5) + j}, {sr(SRD_WO,4)}, s{T0} offen lds', 'wo')

def signal_sentinel(em, lab, both):
    em(f's_cmp_eq_u32 s{S_W4}, 0\n s_cbranch_scc0 {lab}')
    em(f's_lshl_b32 s{T0}, s{S_BR}, 4\n s_add_u32 s{T0}, s{T0}, s{S_RT}\n s_add_u32 s{T0}, s{T0}, 8\n s_lshl_b32 s{T0}, s{T0}, 2\n s_lshl_b32 s{T1}, s{S_GRP}, 2')
    em(f'v_mov_b32 v1, s{T0}\n v_mov_b32 v2, s{T1}\n v_cmp_eq_u32 vcc, 0, v0\n v_cndmask_b32 v1, v2, v1, vcc\n v_mov_b32 v2, 1')
    em(f's_mov_b64 exec, {3 if both else 1}\n buffer_atomic_add v2, v1, {sr(SRD_DBG,4)}, 0 offen sc1\n s_mov_b64 exec, -1\n{lab}:')

pk = lambda em, d, a: em(f'v_cvt_pk_bf16_f32 v{d}, v{a}, v{a+1}')

B_NS = 6; B_SLOT = 15360
B_XS = (133120, 92160, 108544)
B_HBASE = 149504
B_WO = [92160, 112640, 30720, 51200, 71680]
B_EXCH = 133120
LDS_BYTES = 155648

def B_L(em, cfg):
    if cfg.prioL: em(f's_setprio {cfg.prioL}')
    xdma_addr(em, 4, halo=8)
    em(f's_mul_i32 s{T2}, s{S_GRP}, 160')
    for t in range(4):
        em(f's_lshl_b32 s{T0}, s{S_W4}, 2\n s_add_u32 s{T0}, s{T0}, {t}\n s_lshl_b32 s{60+t}, s{T0}, 10')
        em(f's_mul_i32 s{T1}, s{T0}, 52\n s_lshr_b32 s{T1}, s{T1}, 8\n s_mul_i32 s{T3}, s{T1}, 5\n s_sub_u32 s{T3}, s{T0}, s{T3}\n s_lshl_b32 s{T3}, s{T3}, 6\n s_mul_i32 s{T1}, s{T1}, 1280\n s_add_u32 s{T1}, s{T1}, s{T2}')
        wpattern(em, 11 + t, f's{T3}', 3840, f's{T1}')
    em(f's_cmp_eq_u32 s{S_W4}, 3\n s_cselect_b64 vcc, -1, 0\n v_cndmask_b32 v14, v14, v8, vcc')
    for sl in range(B_NS):
        em(f's_add_u32 s{T0}, s63, {sl*B_SLOT}\n s_cmp_eq_u32 s{S_W4}, 3\n s_cselect_b32 s{64+sl}, {B_HBASE + ((sl+1) % 6)*1024}, s{T0}')
    em(f's_lshl_b32 s70, s{S_W4}, 12\n s_mul_i32 s71, s{S_ROT}, 245760\n s_lshl_b32 s72, s{S_ROT}, 7')
    em('s_waitcnt lgkmcnt(0)'); em.lg = []
    srd(em, SRD_X, 10, 2621440); srd(em, SRD_W, 12, 2457600)
    em(f's_cmp_eq_u32 s{S_W4}, 3\n s_cselect_b32 s{SRD_AUX}, s10, s12\n s_cselect_b32 s{SRD_AUX+1}, s11, s13\n s_cselect_b32 s{SRD_AUX+2}, s{SRD_X+2}, s{SRD_W+2}\n s_mov_b32 s{SRD_AUX+3}, 0x20000')
    def xpart(p, tag):
        for o in (2*(p & 1), 2*(p & 1) + 1):
            em(f's_add_u32 m0, s70, {B_XS[(p >> 1) % 3] + o*1024}')
            em.vmem(f'buffer_load_dwordx4 v{4+o}, {sr(SRD_X,4)}, s72 offen lds', tag)
    def unit(u):
        sl = u % B_NS; p = u + 1
        for t in range(3):
            em(f's_add_u32 m0, s{60+t}, {sl*B_SLOT}')
            em.vmem(f'buffer_load_dwordx4 v{11+t}, {sr(SRD_W,4)}, s71 offen lds', ('u', u))
        if (p & 1) == 0: em('s_add_u32 s72, s72, 128\n s_cmp_eq_u32 s72, 1280\n s_cselect_b32 s72, 0, s72')
        em(f's_add_u32 s73, s72, {(p & 1)*10240}\n s_cmp_eq_u32 s{S_W4}, 3\n s_cselect_b32 s73, s73, s71\n s_mov_b32 m0, s{64+sl}')
        em.vmem(f'buffer_load_dwordx4 v14, {sr(SRD_AUX,4)}, s73 offen lds', ('u', u))
        if p < 20: xpart(p, ('u', u))
        em('s_add_u32 s71, s71, 122880\n s_cmp_eq_u32 s71, 2457600\n s_cselect_b32 s71, 0, s71')
    em(f's_mov_b32 m0, {B_HBASE}')
    em.vmem(f'buffer_load_dwordx4 v8, {sr(SRD_X,4)}, s72 offen lds', ('u', 0))
    xpart(0, ('u', 0))
    unit(0); stamp(em, cfg, 1); unit(1)
    common_srds(em)
    ostore_addr(em, 26, 27)
    for j in range(4): em(f'v_mov_b32 v{28+j}, -1')
    nxt = 2
    if not cfg.early:
        for u in range(2, B_NS - 1): unit(u)
        nxt = B_NS - 1
    wo_patterns(em, 16, 1)
    for j in range(4): em(f'v_mov_b32 v{28+j}, -1')
    for s in range(20):
        trace(em, cfg, 15, 3*s)
        em.wait(vm=[('u', s)]); trace(em, cfg, 15, 3*s + 1); em('s_barrier'); trace(em, cfg, 15, 3*s + 2)
        if s == 0: stamp(em, cfg, 2)
        k = 0
        while nxt <= min(s + cfg.lookB, 19) and k < 2: unit(nxt); nxt += 1; k += 1
        if s == cfg.sentB and not cfg.nosent:
            for mb in range(2): ostore(em, 28, 28, 28, mb, 26, 27, 'sent')
        if s == cfg.sentB + cfg.lookB + 1:
            assert 'sent' not in em.vm
            signal_sentinel(em, 'LB_sig', False)
        if s == 17: wo_unit(em, 0, B_WO[0], 16)
        if s == 18: wo_unit(em, 1, B_WO[1], 16)
        if s == 19:
            for U in (2, 3): wo_unit(em, U, B_WO[U], 16)
    stamp(em, cfg, 3)
    em('s_barrier')
    wo_unit(em, 4, B_WO[4], 16)
    stamp(em, cfg, 4)
    if cfg.trace: em('v_mov_b32 v27, v15')

def B_C(em, cfg):
    XA, HA, TN, TR, TH = 4, 6, (8, 9), (10, 11), (12, 13)
    EXW, EXH, EX0, EXR, OM, OR = 14, 15, 16, 17, 18, 19
    CCUR, CPREV, CPREV0, SEL = 24, 28, 32, 36
    KT = lambda mb, b: 40 + (mb*5 + b)*4
    QT = lambda mb, b: 80 + (mb*5 + b)*4
    VV = lambda b, mb: 120 + b*8 + mb*4
    HK, HK4, HV, HV4 = 160, 164, 168, 172
    WR, XB, HB, KPREV = 0, 24, 56, 24
    masks(em)
    em(f's_lshl_b32 s{T2}, s{S_W4}, 12\n s_add_u32 s{T2}, s{T2}, {B_XS[1]}')
    xread_addr(em, XA, XA + 1, f's{T2}')
    xread_addr(em, HA, HA + 1, B_HBASE)
    tr_addr(em, TN[0], TR[0])
    em(f'v_add_u32 v{TN[1]}, {4*B_SLOT}, v{TN[0]}\n v_add_u32 v{TR[1]}, {4*B_SLOT}, v{TR[0]}')
    em(f's_mul_i32 s{T0}, s{S_W4}, 40\n v_add_u32 v{TH[0]}, s{T0}, v{TN[0]}\n v_add_u32 v{TH[1]}, s{T0}, v{TN[1]}')
    em('v_and_b32 v1, 15, v0\n v_lshrrev_b32 v2, 4, v0\n v_lshlrev_b32 v2, 2, v2\n v_and_b32 v3, 1, v0')
    em(f'v_mov_b32 v20, {f32(-1e38):#x}')
    em(f's_lshl_b32 s{T0}, s{S_RT}, 2\n s_add_u32 s{T0}, s{T0}, s{S_W4}\n s_cmp_eq_u32 s{T0}, 0\n s_cselect_b64 s[80:81], 0, -1')
    for r in range(4):
        em(f'v_add_u32 v21, {r}, v2\n v_cmp_eq_u32 s[76:77], {r & 1}, v3\n v_cmp_le_u32 vcc, v21, v1\n s_and_b64 s[78:79], s[76:77], vcc\n s_andn2_b64 s[76:77], s[76:77], vcc')
        em(f'v_cndmask_b32 v{CCUR+r}, v20, 0, s[78:79]\n v_cndmask_b32 v{CPREV+r}, v20, 0, s[76:77]\n s_and_b64 s[76:77], s[76:77], s[80:81]\n v_cndmask_b32 v{CPREV0+r}, v20, 0, s[76:77]')
    for j in range(2):
        lo, hi = (0x0c0c0100, 0x01000c0c) if j == 0 else (0x0c0c0302, 0x03020c0c)
        em(f'v_mov_b32 v21, {lo:#x}\n v_mov_b32 v22, {hi:#x}\n v_cmp_eq_u32 vcc, 1, v3\n v_cndmask_b32 v21, v21, v22, vcc')
        em(f'v_add3_u32 v22, v2, v3, {2*j}\n v_cmp_le_u32 vcc, v22, v1\n v_mov_b32 v22, 0x0c0c0c0c\n v_cndmask_b32 v{SEL+2+j}, v22, v21, vcc\n v_cndmask_b32 v{SEL+j}, v21, v22, vcc')
    em(f's_mul_i32 s{T0}, s{S_W4}, 5120\n s_add_u32 s{T0}, s{T0}, {B_EXCH}\n v_lshlrev_b32 v1, 3, v0\n v_add_u32 v{EXR}, s{T0}, v1\n v_add_u32 v{EXW}, 5120, v{EXR}')
    em(f's_lshl_b32 s{T0}, s{S_W4}, 9\n s_add_u32 s{T0}, s{T0}, {B_EXCH}\n v_add_u32 v{EXH}, s{T0}, v1\n v_add_u32 v{EX0}, {B_EXCH}, v1')
    em(f's_cmp_eq_u32 s{S_W4}, 3\n s_cselect_b64 s[68:69], 0, -1')
    ostore_addr(em, OM, OR)
    em('s_waitcnt lgkmcnt(0)'); em.lg = []
    common_srds(em)
    em(f's_mov_b32 s70, {f32(20 ** -0.5 * LOG2E):#x}')
    if cfg.prio: em(f's_setprio {cfg.prio}')
    stamp(em, cfg, 1)
    st = Stream(em, cfg); items = []
    def xreads(kp):
        fs = []
        for ks in range(2):
            for mb in range(2):
                fs.append(lambda ks=ks, mb=mb: em.lds(f'ds_read_b128 {ar(XB + (kp%2)*16 + ks*8 + mb*4, 4)}, v{XA+ks} offset:{B_XS[kp % 3] - B_XS[1] + mb*2048}', ('x', kp)))
            fs.append(lambda ks=ks: em.lds(f'ds_read_b128 {ar(HB + (kp%2)*8 + ks*4, 4)}, v{HA+ks} offset:{(kp % 3)*2048}', ('x', kp)))
        return fs
    for s in range(20):
        kp, ks = s >> 1, s & 1
        sl = s % B_NS; win = 1 if sl >= 4 else 0; base = (sl - 4*win) * B_SLOT
        xf = lambda mb: ar(XB + (kp%2)*16 + ks*8 + mb*4, 4)
        hf = ar(HB + (kp%2)*8 + ks*4, 4)
        C = lambda d: (vr(d, 4) if s else '0')
        order = [('Q', 0), ('Q', 1), ('Q', 2), ('Q', 3), ('Q', 4), ('V', 0), ('V', 1), ('V', 2), ('V', 3), ('HV', 0), ('V', 4),
                 ('K', 0), ('K', 1), ('K', 2), ('K', 3), ('HK', 0), ('K', 4)]
        if s == 19: order = order[5:] + order[:5]
        for n, (sec, b) in enumerate(order):
            w = WR + (len(items) % 6) * 4
            so = {'Q': 0, 'K': 5120, 'V': 10240, 'HK': 5120, 'HV': 10240}[sec] + base
            if sec in ('HK', 'HV'): a, off = TH[win], so
            elif b < 4: a, off = TN[win], so + 40*b
            else: a, off = TR[win], so
            W = ar(w, 4)
            if sec == 'K': mf = [f'{MF} {vr(KT(mb,b),4)}, {W}, {xf(mb)}, {C(KT(mb,b))}' for mb in range(2)]
            if sec == 'Q': mf = [f'{MF} {vr(QT(mb,b),4)}, {W}, {xf(mb)}, {C(QT(mb,b))}' for mb in range(2)]
            if sec == 'V': mf = [f'{MF} {vr(VV(b,mb),4)}, {xf(mb)}, {W}, {C(VV(b,mb))}' for mb in range(2)]
            if sec == 'K' and b == 4: mf.append(f'{MF} {vr(HK4,4)}, {W}, {hf}, {C(HK4)}')
            if sec == 'V' and b == 4: mf.append(f'{MF} {vr(HV4,4)}, {hf}, {W}, {C(HV4)}')
            if sec == 'HK': mf = [f'{MF} {vr(HK,4)}, {W}, {hf}, {C(HK)}']
            if sec == 'HV': mf = [f'{MF} {vr(HV,4)}, {hf}, {W}, {C(HV)}']
            it = dict(reads=[f'ds_read_b64_tr_b16 {ar(w,2)}, v{a} offset:{off}', f'ds_read_b64_tr_b16 {ar(w+2,2)}, v{a} offset:{off+2560}'],
                      tag=('w', s, n), need=[('x', kp)], mf=mf)
            if n == 0:
                def pre(s=s):
                    em('s_barrier')
                    if s == 0: stamp(em, cfg, 2)
                    if (s & 1) == 0: st.push(*xreads(s >> 1), tag=('x', s >> 1))
                it['pre'] = pre; it['flush'] = True
            items.append(it)
    st.run(items)
    stamp(em, cfg, 3)
    def packK(mb):
        k4 = KT(mb, 4)
        pk(em, k4, k4); pk(em, k4+1, k4+2)
        for h in range(4):
            k = KT(mb, h); pk(em, k, k); pk(em, k+1, k+2)
            em(f'v_mov_b32 v{k+2}, v{k4}\n v_mov_b32 v{k+3}, v{k4+1}')
    def packQ(mb):
        q4 = QT(mb, 4)
        pk(em, q4, q4); pk(em, q4+1, q4+2)
        for h in range(4):
            q = QT(mb, h); pk(em, q, q); pk(em, q+1, q+2)
            em(f'v_cndmask_b32 v{q+2}, 0, v{q4}, {sr(S_ROWM+2*h,2)}\n v_cndmask_b32 v{q+3}, 0, v{q4+1}, {sr(S_ROWM+2*h,2)}')
    for b in range(5):
        v = VV(b, 0)
        pk(em, v+3, v+2); pk(em, v+2, v); pk(em, v+4, v+4); pk(em, v+5, v+6)
    for hh in (HV, HV4, HK, HK4): pk(em, hh, hh); pk(em, hh+1, hh+2)
    packK(1)
    em.lds(f'ds_write_b64 v{EXH}, {vr(HK,2)}'); em.lds(f'ds_write_b64 v{EXH}, {vr(HV,2)} offset:2560')
    em.lds(f'ds_write_b64 v{EX0}, {vr(HK4,2)} offset:2048'); em.lds(f'ds_write_b64 v{EX0}, {vr(HV4,2)} offset:{2560+2048}')
    em('s_mov_b64 exec, s[68:69]')
    for b in range(5): em.lds(f'ds_write_b64 v{EXW}, {vr(VV(b,0)+4,2)} offset:{2560 + b*512}')
    for b in range(5): em.lds(f'ds_write_b64 v{EXW}, {vr(KT(1,b),2)} offset:{b*512}')
    em('s_mov_b64 exec, -1')
    packK(0); packQ(1)
    em.wait_all(vm=False); em('s_barrier')
    for h in range(4):
        em.lds(f'ds_read_b64 {ar(KPREV+4*h,2)}, v{EXR} offset:{h*512}', 'kp'); em.lds(f'ds_read_b64 {ar(KPREV+4*h+2,2)}, v{EXR} offset:2048', 'kp')
    for b in range(5): em.lds(f'ds_read_b64 {vr(VV(b,0),2)}, v{EXR} offset:{2560 + b*512}', 'vp')
    SP = {1: [160, 164, 168, 172], 0: [KT(0,4), KT(1,4), QT(1,4), QT(0,4)]}
    SC = {1: [176, 180, 4, 8], 0: [KT(1,h) for h in range(4)]}
    for h in range(4):
        em(f'{MF} {vr(SP[1][h],4)}, {vr(KT(0,h),4)}, {vr(QT(1,h),4)}, {vr(CPREV,4)}')
        em(f'{MF} {vr(SC[1][h],4)}, {vr(KT(1,h),4)}, {vr(QT(1,h),4)}, {vr(CCUR,4)}')
    packQ(0)
    for h in range(4): em(f'{MF} {vr(SC[0][h],4)}, {vr(KT(0,h),4)}, {vr(QT(0,h),4)}, {vr(CCUR,4)}')
    em.wait(lg=['kp'])
    for h in range(4): em(f'{MF} {vr(SP[0][h],4)}, {ar(KPREV+4*h,4)}, {vr(QT(0,h),4)}, {vr(CPREV0,4)}')
    def seq_reduce(regs, op, tmp):
        a, b, c, d = regs
        return [f'v_permlane16_swap_b32 v{a}, v{b}', f'v_permlane16_swap_b32 v{c}, v{d}', f'{op} v{a}, v{a}, v{b}', f'{op} v{c}, v{c}, v{d}',
                f'v_permlane32_swap_b32 v{a}, v{c}', f'{op} v{tmp}, v{a}, v{c}']
    def seq_bcast(src, regs):
        a, b, c, d = regs
        return [f'v_mov_b32 v{a}, v{src}', f'v_mov_b32 v{c}, v{src}', f'v_permlane32_swap_b32 v{a}, v{c}', f'v_mov_b32 v{b}, v{a}', f'v_mov_b32 v{d}, v{c}',
                f'v_permlane16_swap_b32 v{a}, v{b}', f'v_permlane16_swap_b32 v{c}, v{d}']
    def zipemit(a, b):
        for i in range(max(len(a), len(b))):
            if i < len(a): em(a[i])
            if i < len(b): em(b[i])
    def soft(g):
        P, Cc = SP[g], SC[g]; T = 20 + g; L = []
        st1 = []
        for h in range(4):
            p, c = P[h], Cc[h]
            st1 += [f'v_max3_f32 v{p}, v{p}, v{p+1}, v{c}', f'v_max3_f32 v{p+2}, v{p+2}, v{p+3}, v{c+2}', f'v_max_f32 v{p}, v{p}, v{c+1}', f'v_max_f32 v{p+1}, v{p+2}, v{c+3}', f'v_max_f32 v{p+2}, v{p}, v{p+1}']
        R = [p + 2 for p in P]
        st2 = seq_reduce(R, 'v_max_f32', T) + [f'v_mul_f32 v{T}, s70, v{T}'] + seq_bcast(T, R)
        st3 = []
        for p in P: st3 += [f'v_fma_f32 v{p}, v{p}, s70, -v{p+2}', f'v_fma_f32 v{p+1}, v{p+1}, s70, -v{p+2}']
        for p in P: st3 += [f'v_exp_f32 v{p}, v{p}', f'v_exp_f32 v{p+1}, v{p+1}']
        for p in P: st3 += [f'v_add_f32 v{p+2}, v{p}, v{p+1}']
        st4 = seq_reduce(R, 'v_add_f32', T) + [f'v_rcp_f32 v{T}, v{T}'] + seq_bcast(T, R)
        st5 = []
        for h in range(4):
            p, c = P[h], Cc[h]
            st5 += [f'v_mul_f32 v{p}, v{p}, v{p+2}', f'v_mul_f32 v{p+1}, v{p+1}, v{p+2}', f'v_cvt_pk_bf16_f32 v{p}, v{p}, v{p+1}'] + [f'v_perm_b32 v{c+j}, v{p}, v{p}, v{SEL+j}' for j in range(4)]
        return st1, st2, st3, st4, st5
    s1, s0 = soft(1), soft(0)
    for x in s1[0]: em(x)
    zipemit(s1[1], s0[0]); zipemit(s0[1], s1[2]); zipemit(s1[3], s0[2]); zipemit(s0[3], s1[4])
    def pv(g):
        L = []
        for h in range(4):
            L.append(f'{MF} {vr(QT(g,h),4)}, {vr(VV(h,0)+2*g,4)}, {vr(SC[g][h],4)}, 0')
            L.append(f'{MF} {vr(SP[g][h],4)}, {vr(VV(4,0)+2*g,4)}, {vr(SC[g][h],4)}, 0')
        return L
    m1 = pv(1)
    for i, x in enumerate(s0[4]):
        em(x)
        if i % 3 == 2 and m1: em(m1.pop(0))
    for x in m1: em(x)
    em.wait(lg=['vp'])
    m0 = pv(0)
    def outp(g, inter):
        o0, o1, o2 = SC[g][0], SC[g][1], SC[g][2]
        for h in range(4):
            o = (o0, o1)[h >> 1] + 2*(h & 1)
            pk(em, o, QT(g,h)); pk(em, o + 1, QT(g,h) + 2)
            for _ in range(2):
                if inter: em(inter.pop(0))
        for h in range(4):
            em(f's_mov_b64 exec, {sr(S_ROWM+2*h,2)}'); pk(em, o2, SP[g][h]); pk(em, o2 + 1, SP[g][h] + 2)
        em('s_mov_b64 exec, -1')
        ostore(em, o0, o1, o2, g, OM, OR)
    outp(1, m0); outp(0, [])
    stamp(em, cfg, 4)

A_NS = 5; A_SLOT = 20480; A_XBASE = A_NS * A_SLOT; A_U16 = A_XBASE + 49152
A_WO = [0, 20480, 40960, 61440, 81920]
def mkitem(idx, slot, img, b, mf, need, TN, TR):
    w = (idx % 6) * 4
    win = 1 if slot >= 3 else 0
    off = (slot - 3*win) * A_SLOT + img * 5120 + (40*b if b < 4 else 0)
    a = TN[win] if b < 4 else TR[win]
    return dict(reads=[f'ds_read_b64_tr_b16 {ar(w,2)}, v{a} offset:{off}', f'ds_read_b64_tr_b16 {ar(w+2,2)}, v{a} offset:{off+2560}'],
                tag=('w', idx), need=need, mf=[m.replace('@W', ar(w, 4)) for m in mf])

def phi(em, regs, tmp, negc):
    for i in range(0, len(regs), 8):
        ch = regs[i:i+8]
        for j, r in enumerate(ch): em(f'v_fma_f32 v{tmp+j}, v{r}, s74, v{negc}')
        for j, r in enumerate(ch): em(f'v_exp_f32 v{tmp+j}, v{tmp+j} clamp\n v_max_f32 v{r}, s75, v{r}')
        for j, r in enumerate(ch): em(f'v_add_f32 v{r}, v{r}, v{tmp+j}')

def A_L(em, cfg):
    if cfg.prioL: em(f's_setprio {cfg.prioL}')
    VW, XA, TN, TR = 8, 13, (15, 16), (17, 18)
    A1LO, A1HI, A2LO, A2HI, OM, OR, NEGC, PSENT, CEPS = 19, 20, 21, 22, 23, 24, 25, 26, 28
    QT = lambda mb, b: 32 + (mb*5 + b)*4
    def xr(kp, ks, mb):
        i = kp*16 + ks*8 + mb*4
        return ar(24 + i, 4) if i < 48 else vr(72 + i - 48, 4)
    xdma_addr(em, 4)
    em(f's_mul_i32 s{T2}, s{S_GRP}, 160')
    for j in range(5): wpattern(em, VW + j, j*64, 3840, f's{T2}')
    em(f's_mul_i32 s68, s{S_W4}, 5120\n s_mul_i32 s69, s{S_W4}, 12288\n s_add_u32 s69, s69, {A_XBASE}')
    em(f's_lshr_b32 s{T0}, s{S_W4}, 1\n s_mul_i32 s{T0}, s{T0}, 122880\n s_and_b32 s{T1}, s{S_W4}, 1\n s_mul_i32 s{T1}, s{T1}, 1280\n s_add_u32 s70, s{T0}, s{T1}\n s_add_u32 s70, s70, 1280')
    em(f's_mul_i32 s71, s{S_ROT}, 245760\n s_lshl_b32 s72, s{S_ROT}, 7')
    em(f's_lshr_b32 s{T0}, s{S_W4}, 1\n s_add_u32 s{T0}, s{T0}, s{S_ROT}\n s_cmp_ge_u32 s{T0}, 10\n s_cselect_b32 s{T1}, 10, 0\n s_sub_u32 s{T0}, s{T0}, s{T1}\n s_mul_i32 s80, s{T0}, 245760\n s_and_b32 s{T1}, s{S_W4}, 1\n s_mul_i32 s81, s{T1}, 122880')
    em('s_waitcnt lgkmcnt(0)'); em.lg = []
    srd(em, SRD_X, 4, 2621440); srd(em, SRD_W, 6, 2457600)
    def unit(u):
        sl = u % A_NS
        if u < 10:
            for o in range(0 if cfg.nox else 4):
                em(f's_add_u32 m0, s69, {(u % 3)*4096 + o*1024}')
                em.vmem(f'buffer_load_dwordx4 v{4+o}, {sr(SRD_X,4)}, s72 offen lds', ('u', u))
            em('s_add_u32 s73, s71, s70')
        else: em('s_add_u32 s73, s80, s81')
        for j in range(1 if cfg.now else 5):
            em(f's_add_u32 m0, s68, {sl*A_SLOT + j*1024}')
            em.vmem(f'buffer_load_dwordx4 v{VW+j}, {sr(SRD_W,4)}, s73 offen lds', ('u', u))
        if u < 9:
            em('s_add_u32 s71, s71, 245760\n s_cmp_eq_u32 s71, 2457600\n s_cselect_b32 s71, 0, s71')
            em('s_add_u32 s72, s72, 128\n s_cmp_eq_u32 s72, 1280\n s_cselect_b32 s72, 0, s72')
        if u >= 10: em(f's_add_u32 s80, s80, 491520\n s_cmp_ge_u32 s80, 2457600\n s_cselect_b32 s{T0}, 2457600, 0\n s_sub_u32 s80, s80, s{T0}')
    unit(0); stamp(em, cfg, 1); unit(1)
    common_srds(em)
    ostore_addr(em, OM, OR)
    xread_addr(em, XA, XA + 1, 's69')
    if not cfg.early: unit(2)
    masks(em)
    tr_addr(em, TN[0], TR[0])
    em(f'v_add_u32 v{TN[1]}, {3*A_SLOT}, v{TN[0]}\n v_add_u32 v{TR[1]}, {3*A_SLOT}, v{TR[0]}')
    em(f'''v_and_b32 v1, 15, v0
        v_lshrrev_b32 v2, 4, v0
        v_mul_u32_u24 v3, 40, v1
        v_lshl_add_u32 v{A1LO}, v2, 3, v3
        v_add_u32 v{A1LO}, {A_U16}, v{A1LO}
        v_add_u32 v{A1HI}, {A_U16 + 32}, v3
        v_lshrrev_b32 v3, 2, v1
        v_add_u32 v3, 16, v3
        v_and_b32 v27, 3, v1
        v_cmp_eq_u32 vcc, 0, v27
        v_cndmask_b32 v3, 20, v3, vcc
        v_mul_u32_u24 v3, 40, v3
        v_lshl_add_u32 v{A2LO}, v2, 3, v3
        v_add_u32 v{A2LO}, {A_U16}, v{A2LO}
        v_add_u32 v{A2HI}, {A_U16 + 32}, v3
        s_lshl_b32 s{T0}, s{S_GRP}, 4
        s_add_u32 s{T0}, s{T0}, s{S_RT}
        s_lshl_b32 s{T0}, s{T0}, 12
        s_lshl_b32 s{T1}, s{S_W4}, 10
        s_add_u32 s{T0}, s{T0}, s{T1}
        s_add_u32 s{T0}, s{T0}, {WS_PART}
        v_lshlrev_b32 v{PSENT}, 4, v0
        v_add_u32 v{PSENT}, s{T0}, v{PSENT}
        v_mov_b32 v{NEGC}, {f32(-EPS*LOG2E):#x}
        s_mov_b32 s74, {f32(LOG2E):#x}
        s_mov_b32 s75, {f32(EPS):#x}''')
    for j in range(4): em(f'v_mov_b32 v{CEPS+j}, -1')
    for kp in range(10):
        trace(em, cfg, 27, 3*kp)
        em.wait(vm=[('u', kp)], lg=[('x', kp - 1)]); trace(em, cfg, 27, 3*kp + 1); em('s_barrier'); trace(em, cfg, 27, 3*kp + 2)
        if kp == 0: stamp(em, cfg, 2)
        def xrd():
            for ks in range(2):
                for mb in range(2):
                    if not cfg.noxr: em.lds(f'ds_read_b128 {xr(kp,ks,mb)}, v{XA+ks} offset:{(kp % 3)*4096 + mb*2048}', ('x', kp))
        if not cfg.xlate: xrd()
        if kp >= 1 or cfg.early: unit(kp + 2)
        if kp == 9: unit(12)
        if cfg.xlate: xrd()
        if kp == cfg.sentA and not cfg.nosent:
            em.vmem(f'buffer_store_dwordx4 {vr(CEPS,4)}, v{PSENT}, {sr(SRD_WS,4)}, 0 offen sc1', 'sent')
            for mb in range(2): ostore(em, CEPS, CEPS, CEPS, mb, OM, OR, 'sent')
        if kp == cfg.sentA + 3:
            assert 'sent' not in em.vm
            signal_sentinel(em, 'LA_sig', True)
            for j in range(4): em(f'v_mov_b32 v{CEPS+j}, {f32(EPS):#x}')
    em.wait(vm=[('u', 12)], lg=[('x', 9)]); em('s_barrier')
    stamp(em, cfg, 3)
    unit(13); unit(14)
    em('s_setprio 0')
    st = Stream(em, cfg); items = []
    for U in range(5):
        u = 10 + U
        for q in range(4):
            kp, ks = 2*U + (q >> 1), q & 1
            for b in range(5):
                first = U == 0 and q == 0
                mf = [f'{MF} {vr(QT(mb,b),4)}, @W, {xr(kp,ks,mb)}, {vr(CEPS,4) if first else vr(QT(mb,b),4)}' for mb in range(2)]
                it = mkitem(len(items), u % A_NS, q, b, mf, [], TN, TR)
                if u == 13 and q == 0 and b == 0:
                    def pre(): em.wait(vm=[('u', 14)]); em('s_barrier')
                    it['pre'] = pre
                items.append(it)
    st.run(items)
    stamp(em, cfg, 4)
    def packQ(mb):
        q4 = QT(mb, 4)
        phi(em, list(range(q4, q4 + 4)), 168, NEGC)
        pk(em, q4, q4); pk(em, q4+1, q4+2)
        for h in range(4):
            q = QT(mb, h)
            if h % 2 == 0: phi(em, list(range(q, q + 8)), 168, NEGC)
            pk(em, q, q); pk(em, q+1, q+2)
            em(f'v_cndmask_b32 v{q+2}, 0, v{q4}, {sr(S_ROWM+2*h,2)}\n v_cndmask_b32 v{q+3}, 0, v{q4+1}, {sr(S_ROWM+2*h,2)}')
    packQ(0); packQ(1)
    stamp(em, cfg, 5)
    em('s_barrier')
    OP = 72
    for h in range(4):
        em.lds(f'ds_read_b64 {vr(OP+8*h,2)}, v{A1LO} offset:{840*h}', ('op', h)); em.lds(f'ds_read_b64 {vr(OP+8*h+2,2)}, v{A1HI} offset:{840*h}', ('op', h))
        em.lds(f'ds_read_b64 {vr(OP+8*h+4,2)}, v{A2LO} offset:{840*h}', ('op', h)); em.lds(f'ds_read_b64 {vr(OP+8*h+6,2)}, v{A2HI} offset:{840*h}', ('op', h))
    R1 = lambda mb, h: 104 + (mb*4 + h)*8
    for h in range(4):
        em.wait(lg=[('op', h)])
        em(f'{MF} {vr(R1(0,h)+4,4)}, {vr(OP+8*h+4,4)}, {vr(QT(0,h),4)}, 0')
        em(f'{MF} {vr(R1(0,h),4)}, {vr(OP+8*h,4)}, {vr(QT(0,h),4)}, 0')
    m1 = []
    for h in range(4):
        m1.append(f'{MF} {vr(R1(1,h)+4,4)}, {vr(OP+8*h+4,4)}, {vr(QT(1,h),4)}, 0')
        m1.append(f'{MF} {vr(R1(1,h),4)}, {vr(OP+8*h,4)}, {vr(QT(1,h),4)}, 0')
    for mb in range(2):
        O = 168 if mb == 0 else 72
        L = []
        for h in range(4): L.append(f'v_add_f32 v{R1(mb,h)+5}, s75, v{R1(mb,h)+5}')
        for h in range(4): L.append(f'v_rcp_f32 v{R1(mb,h)+5}, v{R1(mb,h)+5}')
        for h in range(4):
            r = R1(mb, h)
            L += [f'v_mul_f32 v{r+j}, v{r+j}, v{r+5}' for j in range(5)]
            L += [f'v_cvt_pk_bf16_f32 v{O+2*h}, v{r}, v{r+1}', f'v_cvt_pk_bf16_f32 v{O+2*h+1}, v{r+2}, v{r+3}']
        L += [f'v_cvt_pk_bf16_f32 v{O+8}, v{R1(mb,0)+4}, v{R1(mb,1)+4}', f'v_cvt_pk_bf16_f32 v{O+9}, v{R1(mb,2)+4}, v{R1(mb,3)+4}']
        for i, x in enumerate(L):
            if m1 and i % 2 == 0: em(m1.pop(0))
            em(x)
        ostore(em, O, O + 4, O + 8, mb, OM, OR)
    stamp(em, cfg, 6)

def A_C(em, cfg):
    XA, TN, TR = 4, (6, 7), (8, 9)
    AD, AY, AYP, AX3, AZ, RA, PS, PL, UW, ZP, WOP, NEGC, PRB = 10, 11, 12, 13, 14, 15, 16, 17, 18, 19, 20, 30, 31
    CEPS, ONEH, SELR = 32, 36, 56
    KK = lambda b, mb: 60 + b*8 + mb*4
    VV = lambda b, mb: 100 + b*8 + mb*4
    XB = 24
    masks(em, col=True)
    em(f's_mul_i32 s80, s{S_W4}, 12288\n s_add_u32 s80, s80, {A_XBASE}')
    xread_addr(em, XA, XA + 1, 's80')
    tr_addr(em, TN[0], TR[0])
    em(f'v_add_u32 v{TN[1]}, {3*A_SLOT}, v{TN[0]}\n v_add_u32 v{TR[1]}, {3*A_SLOT}, v{TR[0]}')
    wo_patterns(em, WOP, 0)
    em('v_and_b32 v1, 15, v0\n v_lshrrev_b32 v2, 4, v0\n v_mov_b32 v3, 0x3f803f80')
    for h, col in enumerate((0, 4, 8, 12, 1)):
        em(f'v_cmp_eq_u32 vcc, {col}, v1')
        for j in range(4): em(f'v_cndmask_b32 v{ONEH+4*h+j}, 0, v3, vcc')
    em('v_mov_b32 v3, 0x3f80\n v_mov_b32 v30, 0x3f800000')
    for j in range(4):
        em(f'v_cmp_eq_u32 vcc, {2*j}, v1\n v_cndmask_b32 v{SELR+j}, 0, v3, vcc\n v_cmp_eq_u32 vcc, {2*j+1}, v1\n v_cndmask_b32 v{SELR+j}, v{SELR+j}, v30, vcc')
    for j in range(4): em(f'v_mov_b32 v{CEPS+j}, {f32(EPS):#x}')
    em(f'''v_mul_u32_u24 v3, 5, v1
        v_add_u32 v{AD}, v3, v2
        v_add_u32 v{AY}, 4, v3
        v_and_b32 v3, 3, v1
        v_mul_u32_u24 v3, 5, v3
        v_add_u32 v{AYP}, v3, v2
        v_add_u32 v{AYP}, 80, v{AYP}
        v_mul_u32_u24 v30, 105, v2
        v_add_u32 v{AX3}, v30, v3
        v_add_u32 v{AX3}, 84, v{AX3}
        v_lshrrev_b32 v3, 2, v1
        v_mul_u32_u24 v3, 105, v3
        v_add_u32 v3, v3, v2
        v_add_u32 v3, 100, v3
        v_add_u32 v30, 104, v30
        v_cmp_eq_u32 vcc, 1, v1
        v_cndmask_b32 v{AZ}, v3, v30, vcc
        v_add_u32 v{ZP}, 420, v0''')
    for d in (AD, AY, AYP, AX3, AZ, ZP): em(f'v_lshlrev_b32 v{d}, 4, v{d}\n v_add_u32 v{d}, s80, v{d}')
    em(f'''s_lshl_b32 s{T0}, s{S_W4}, 6
        v_add_u32 v3, s{T0}, v0
        v_lshlrev_b32 v{RA}, 4, v3
        v_add_u32 v{RA}, {A_XBASE}, v{RA}
        s_lshl_b32 s{T0}, s{S_GRP}, 4
        s_add_u32 s{T1}, s{T0}, s{S_RT}
        s_lshl_b32 s{T1}, s{T1}, 12
        s_add_u32 s{T1}, s{T1}, {WS_PART}
        v_lshlrev_b32 v{PS}, 3, v3
        v_add_u32 v{PS}, s{T1}, v{PS}
        s_lshl_b32 s{T0}, s{T0}, 12
        s_lshl_b32 s{T1}, s{S_W4}, 8
        s_add_u32 s{T0}, s{T0}, s{T1}
        s_add_u32 s{T0}, s{T0}, {WS_PART}
        v_lshlrev_b32 v{PL}, 12, v2
        v_lshl_add_u32 v{PL}, v1, 4, v{PL}
        v_add_u32 v{PL}, s{T0}, v{PL}
        v_lshlrev_b32 v{PRB}, 12, v1
        v_lshl_add_u32 v{PRB}, v2, 10, v{PRB}
        s_add_u32 s{T0}, s{T0}, 2048
        v_add_u32 v{PRB}, s{T0}, v{PRB}
        s_add_u32 s{T1}, s{T1}, {A_U16}
        v_lshlrev_b32 v{UW}, 4, v1
        v_lshl_add_u32 v{UW}, v2, 3, v{UW}
        v_add_u32 v{UW}, s{T1}, v{UW}
        v_mov_b32 v{NEGC}, {f32(-EPS*LOG2E):#x}''')
    em('s_waitcnt lgkmcnt(0)'); em.lg = []
    common_srds(em)
    em('s_mov_b32 s4, 0x00f0000f\n s_mov_b32 s5, 0xf0000f00\n s_mov_b32 s6, 0x11131113\n s_mov_b32 s7, 0x11131113')
    em(f's_mov_b32 s8, {f32(LOG2E):#x}\n s_mov_b32 s9, {f32(EPS):#x}\n s_lshl_b32 s10, s{S_GRP}, 2')
    if cfg.prio: em(f's_setprio {cfg.prio}')
    stamp(em, cfg, 1)
    st = Stream(em, cfg); items = []
    def xreads(kp):
        return [(lambda ks=ks, mb=mb: em.lds(f'ds_read_b128 {ar(XB + (kp%2)*16 + ks*8 + mb*4, 4)}, v{XA+ks} offset:{(kp % 3)*4096 + mb*2048}', ('x', kp))) for ks in range(2) for mb in range(2)]
    for kp in range(10):
        for ks in range(2):
            for sec in (1, 0):
                for b in range(5):
                    D = KK if sec == 0 else VV
                    first = kp == 0 and ks == 0
                    mf = [f'{MF} {vr(D(b,mb),4)}, {ar(XB + (kp%2)*16 + ks*8 + mb*4, 4)}, @W, {(vr(CEPS,4) if sec == 0 else "0") if first else vr(D(b,mb),4)}' for mb in range(2)]
                    it = mkitem(len(items), kp % A_NS, ks*2 + sec, b, mf, [('x', kp)], TN, TR)
                    if ks == 0 and sec == 1 and b == 0:
                        def pre(kp=kp):
                            em('s_barrier')
                            if kp == 0: stamp(em, cfg, 2)
                            st.push(*xreads(kp), tag=('x', kp))
                        it['pre'] = pre; it['flush'] = True
                    items.append(it)
    st.run(items)
    em('s_barrier')
    stamp(em, cfg, 3)
    if cfg.prioL: em(f's_setprio {cfg.prioL}')
    def phiC(regs, tmp):
        for j, r in enumerate(regs): em(f'v_fma_f32 v{tmp+j}, v{r}, s8, v{NEGC}')
        for j, r in enumerate(regs): em(f'v_exp_f32 v{tmp+j}, v{tmp+j} clamp\n v_max_f32 v{r}, s9, v{r}')
        for j, r in enumerate(regs): em(f'v_add_f32 v{r}, v{r}, v{tmp+j}')
    for j in range(4): em(f'v_mov_b32 v{176+j}, 0')
    em.lds(f'ds_write_b128 v{ZP}, v[176:179]')
    em('s_mov_b64 exec, 0xfffffff'); em.lds(f'ds_write_b128 v{ZP}, v[176:179] offset:1024'); em('s_mov_b64 exec, -1')
    for b in range(5):
        v = VV(b, 0)
        for j in range(4): pk(em, v + j, v + 2*j)
    Kop = lambda b: vr(KK(b, 0), 4); Vop = lambda b: vr(VV(b, 0), 4)
    rD = lambda h: 140 + 4*h; rY = lambda h: VV(h, 1); rYp = lambda h: 156 + 4*h; rX3 = VV(4, 1); rZ = 172
    pend = []
    for b in (4, 0, 1, 2, 3):
        k = KK(b, 0)
        phiC(list(range(k, k + 8)), 176)
        for j in range(4): pk(em, k + j, k + 2*j)
        if b == 4:
            em(f'{MF} {vr(rX3,4)}, {Kop(4)}, {Vop(4)}, 0'); em(f'{MF} {vr(rZ,4)}, {Kop(4)}, {vr(ONEH+16,4)}, 0')
            for h in range(4): em(f'{MF} {vr(rY(h),4)}, {Kop(4)}, {Vop(h)}, 0')
        else:
            em(f'{MF} {vr(rD(b),4)}, {Kop(b)}, {Vop(b)}, 0'); em(f'{MF} {vr(rYp(b),4)}, {Kop(b)}, {Vop(4)}, 0')
            em(f'{MF} {vr(rZ,4)}, {Kop(b)}, {vr(ONEH+4*b,4)}, {vr(rZ,4)}')
        if b == 0:
            em('s_mov_b64 exec, s[4:5]'); em.lds(f'ds_write_b128 v{AX3}, {vr(rX3,4)}')
            for h in range(4):
                em(f's_mov_b64 exec, {sr(S_ROWM+2*h,2)}'); em.lds(f'ds_write_b128 v{AY}, {vr(rY(h),4)} offset:{1680*h}')
            em('s_mov_b64 exec, -1')
        if b >= 1:
            h = b - 1 if b < 4 else None
            if h is not None:
                em.lds(f'ds_write_b128 v{AD}, {vr(rD(h),4)} offset:{1680*h}')
                em(f's_mov_b64 exec, {sr(S_COLM+2*h,2)}'); em.lds(f'ds_write_b128 v{AYP}, {vr(rYp(h),4)} offset:{1680*h}'); em('s_mov_b64 exec, -1')
    em.lds(f'ds_write_b128 v{AD}, {vr(rD(3),4)} offset:{1680*3}')
    em(f's_mov_b64 exec, {sr(S_COLM+6,2)}'); em.lds(f'ds_write_b128 v{AYP}, {vr(rYp(3),4)} offset:{1680*3}')
    em('s_mov_b64 exec, s[6:7]'); em.lds(f'ds_write_b128 v{AZ}, {vr(rZ,4)}'); em('s_mov_b64 exec, -1')
    em.wait_all(vm=False)
    stamp(em, cfg, 4)
    em('s_barrier')
    T = 140
    for rnd in range(2):
        for w in range(4): em.lds(f'ds_read_b128 {vr(T + rnd*16 + w*4, 4)}, v{RA} offset:{w*12288 + rnd*4096}', ('r', rnd))
    for rnd in range(2):
        em.wait(lg=[('r', rnd)])
        b = T + rnd*16
        for j in range(4): em(f'v_add_f32 v{b+j}, v{b+j}, v{b+4+j}\n v_add_f32 v{b+8+j}, v{b+8+j}, v{b+12+j}')
        for j in range(4): em(f'v_add_f32 v{b+j}, v{b+j}, v{b+8+j}')
        pk(em, b, b); pk(em, b+1, b+2)
        em.vmem(f'buffer_store_dwordx2 {vr(b,2)}, v{PS}, {sr(SRD_WS,4)}, 0 offen offset:{rnd*2048} sc1')
    stamp(em, cfg, 5)
    em(f's_mov_b32 s11, 0\n v_mov_b32 v1, s10\nLA_poll:\n s_mov_b64 exec, 0xffffffff')
    if cfg.noprobe: em('v_mov_b32 v2, 0\n v_mov_b32 v3, 16')
    else: em(f'buffer_load_dword v2, v{PRB}, {sr(SRD_WS,4)}, 0 offen sc1\n buffer_load_dword v3, v1, {sr(SRD_DBG,4)}, 0 offen sc1\n s_waitcnt vmcnt(0)')
    em(f'v_cmp_eq_u32 vcc, -1, v2\n v_cmp_gt_u32 s[76:77], 16, v3\n s_mov_b64 exec, -1\n s_or_b64 vcc, vcc, s[76:77]\n s_cbranch_vccz LA_go')
    em(f's_add_u32 s11, s11, 1\n s_cmp_lt_u32 s11, {SPIN}\n s_cbranch_scc1 LA_poll\nLA_go:')
    em.vm = []
    if cfg.dbgA: stamp(em, cfg, 1)
    PART, RD = 60, 124
    for i in range(4):
        for q in range(4):
            em(f's_mov_b32 s{T0}, {q*16384 + i*1024}')
            em.vmem(f'buffer_load_dwordx4 {vr(PART + (i*4+q)*4, 4)}, v{PL}, {sr(SRD_WS,4)}, s{T0} offen sc1', ('p', i))
    em(f's_cmp_eq_u32 s11, {2*SPIN}\n s_cbranch_scc1 LA_nowo')
    nv = len(em.vm)
    for U in range(3): wo_unit(em, U, A_WO[U], WOP)
    em('LA_nowo:')
    em(f's_cmp_eq_u32 s11, {2*SPIN}\n s_cbranch_scc0 LA_chk\n s_waitcnt vmcnt(0)\nLA_chk:')
    em('v_mov_b32 v2, 0')
    for i in range(4):
        em.wait(vm=[('p', i)])
        for q in range(4):
            r = PART + (i*4+q)*4
            em(f'v_max3_u32 v2, v2, v{r}, v{r+1}\n v_max3_u32 v2, v2, v{r+2}, v{r+3}')
            em(f'{MF} {vr(RD+4*i,4)}, {vr(SELR,4)}, {vr(r,4)}, {vr(RD+4*i,4) if q else "0"}')
    em(f'v_cmp_eq_u32 vcc, -1, v2\n s_cbranch_vccz LA_ok\n s_add_u32 s12, s12, 1\n s_mov_b32 s11, {2*SPIN}\n s_cmp_lt_u32 s12, {SPIN}\n s_cbranch_scc1 LA_go\nLA_ok:')
    if cfg.dbgA: stamp(em, cfg, 2)
    for i in range(4): pk(em, RD+4*i, RD+4*i); pk(em, RD+4*i+1, RD+4*i+2)
    em('s_mov_b64 exec, 0xffffffff')
    for i in range(4): em.lds(f'ds_write_b64 v{UW}, {vr(RD+4*i,2)} offset:{i*1024}')
    em('s_mov_b64 exec, -1')
    em.wait_all(vm=False)
    stamp(em, cfg, 6)
    em('s_barrier')
    for U in (3, 4): wo_unit(em, U, A_WO[U], WOP)

def common_srds(em):
    srd_sel(em, SRD_WO, 8, 14, 819200)
    srd(em, SRD_OUT, 16, 2048*1280*2); srd(em, SRD_DBG, 18, 256); srd(em, SRD_WS, 20, WS_BYTES)
    em('s_mov_b32 s23, 20480\n s_mov_b32 s12, 0')
    em(f's_mul_i32 s20, s{S_W4}, 5120\n s_mul_i32 s21, s{S_W4}, 51200\n s_mul_i32 s22, s{S_W4}, 204800')

def phase2(em, cfg):
    OF, ACC = 40, 120
    acc = lambda mb, b: ACC + (mb*5 + b)*4
    OL, TA, TM, PRB, XW, XR, TW, TRD, STO = 4, 6, 10, 11, 12, 13, 14, 15, 18
    em('LP2:')
    trace2(em, cfg, 0)
    for U in range(5): em(f's_mov_b32 s{T0}, {A_WO[U]}\n s_cmp_eq_u32 s{S_BR}, 0\n s_cselect_b32 s{4+U}, s{T0}, {B_WO[U]}')
    em(f'''s_lshr_b32 s9, s{S_WAVE}, 2
        s_lshl_b32 s10, s{S_BR}, 7
        s_lshl_b32 s{T0}, s{S_RT2}, 3
        s_add_u32 s10, s10, s{T0}
        s_lshl_b32 s{T0}, s{S_W4}, 1
        s_add_u32 s10, s10, s{T0}
        s_mul_i32 s10, s10, 20480
        v_lshlrev_b32 v1, 4, v0
        v_add_u32 v{OL}, s10, v1
        v_add_u32 v{OL+1}, 20480, v{OL}''')
    tr_addr(em, TM)
    em(f's_cmp_eq_u32 s9, 0\n s_cselect_b32 s4, s4, s6\n s_cselect_b32 s5, s5, s7')
    for i in range(4):
        em(f'''s_add_u32 s{T0}, s{S_CT}, {i}
            s_and_b32 s{T0}, s{T0}, 3
            s_lshl_b32 s{T1}, s9, 2
            s_add_u32 s{T1}, s{T1}, s{T0}
            s_lshl_b32 s{14+i}, s{T1}, 11
            s_cmp_ge_u32 s{T0}, 2
            s_cselect_b32 s{T1}, s5, s4
            s_and_b32 s{T0}, s{T0}, 1
            s_mul_i32 s{T0}, s{T0}, 10240
            s_add_u32 s{T1}, s{T1}, s{T0}
            v_add_u32 v{TA+i}, s{T1}, v{TM}''')
    em(f's_mul_i32 s{T0}, s9, 10240\n s_add_u32 s{T0}, s{T0}, s8\n v_add_u32 v{TM}, s{T0}, v{TM}\n s_lshl_b32 s18, s9, 11\n s_add_u32 s18, s18, 16384')
    em(f'''v_and_b32 v1, 1, v0
        v_lshlrev_b32 v1, 3, v1
        v_bfe_u32 v2, v0, 1, 1
        v_lshl_add_u32 v1, v2, 10, v1
        v_bfe_u32 v2, v0, 2, 1
        v_mul_u32_u24 v2, 20480, v2
        s_add_u32 s{T0}, s10, s18
        v_add3_u32 v{PRB}, v1, v2, s{T0}
        s_lshl_b32 s{T0}, s{S_BR}, 4
        s_add_u32 s{T0}, s{T0}, s{S_RT2}
        s_add_u32 s{T0}, s{T0}, 8
        s_lshl_b32 s{T0}, s{T0}, 2
        v_mov_b32 v21, s{T0}''')
    def exbase(d, sj):
        em(f's_mul_i32 s{d}, s{sj}, 5120\n s_cmp_ge_u32 s{sj}, 6\n s_cselect_b32 s{T2}, {133120 - 30720}, 0\n s_cmp_eq_u32 s{S_BR}, 0\n s_cselect_b32 s{T2}, {A_XBASE}, s{T2}\n s_add_u32 s{d}, s{d}, s{T2}')
    exbase(T0, S_WAVE); em(f's_xor_b32 s{T3}, s{S_WAVE}, 4'); exbase(T1, T3)
    em(f'v_lshlrev_b32 v1, 4, v0\n v_add_u32 v{XW}, s{T0}, v1\n v_add_u32 v{XR}, s{T1}, v1')
    em(f'v_and_b32 v1, 15, v0\n v_mul_u32_u24 v1, 176, v1\n v_lshrrev_b32 v2, 4, v0\n v_lshl_add_u32 v1, v2, 3, v1\n v_add_u32 v{TW}, s{T1}, v1')
    em(f'''s_lshl_b32 s{T0}, s{S_RT2}, 7
        s_lshl_b32 s{T2}, s{S_W4}, 5
        s_add_u32 s{T0}, s{T0}, s{T2}
        s_lshl_b32 s{T2}, s9, 4
        s_add_u32 s{T0}, s{T0}, s{T2}
        s_mul_i32 s{T0}, s{T0}, 2560
        s_mul_i32 s{T2}, s{S_BR}, 1280
        s_add_u32 s{T0}, s{T0}, s{T2}
        s_mul_i32 s{T2}, s{S_CT}, 160
        s_add_u32 s{T0}, s{T0}, s{T2}''')
    for j in range(3):
        em(f'v_add_u32 v1, {j*64}, v0'); div10(em, 2, 3, 1, 22)
        em(f'v_mul_u32_u24 v1, 176, v2\n v_lshl_add_u32 v1, v3, 4, v1\n v_add_u32 v{TRD+j}, s{T1}, v1')
        em(f'v_mul_u32_u24 v1, 2560, v2\n v_lshl_add_u32 v1, v3, 4, v1\n v_add_u32 v{STO+j}, s{T0}, v1')
    em('s_mov_b32 s11, 0\n s_mov_b32 s12, 0')
    trace2(em, cfg, 1)
    em('s_cmp_eq_u32 s13, 0\n s_cbranch_scc1 LP2_nw\n s_waitcnt vmcnt(0)\nLP2_nw:')
    trace2(em, cfg, 2)
    em('s_barrier')
    trace2(em, cfg, 3)
    em('s_setprio 0')
    em('LP2_poll:\n s_mov_b64 exec, 0xff')
    em(f'buffer_load_dword v2, v{PRB}, {sr(SRD_WS,4)}, 0 offen sc1\n buffer_load_dword v3, v21, {sr(SRD_DBG,4)}, 0 offen sc1\n s_waitcnt vmcnt(0)')
    em(f'v_cmp_eq_u32 vcc, -1, v2\n v_cmp_gt_u32 s[76:77], 8, v3\n s_mov_b64 exec, -1\n s_or_b64 vcc, vcc, s[76:77]\n s_cbranch_vccz LP2_go')
    em(f's_add_u32 s11, s11, 1\n s_cmp_lt_u32 s11, {SPIN}\n s_cbranch_scc1 LP2_poll\nLP2_go:')
    em.vm = []; em.lg = []
    stamp(em, cfg, 7)
    trace2(em, cfg, 4)
    for g in range(5):
        for p in range(2):
            for mb in range(2):
                em.vmem(f'buffer_load_dwordx4 {vr(OF + g*16 + p*8 + mb*4, 4)}, v{OL+mb}, {sr(SRD_WS,4)}, s{14+g} offen offset:{p*1024} sc1', ('o', g))
    trace2(em, cfg, 5)
    st = Stream(em, cfg); items = []
    for g in range(5):
        for p in range(2):
            for b in range(5):
                w = (len(items) % 6)*4
                off = p*5120 + 32*b; a = TA + g
                first = g == 0 and p == 0
                it = dict(reads=[f'ds_read_b64_tr_b16 {ar(w,2)}, v{a} offset:{off}', f'ds_read_b64_tr_b16 {ar(w+2,2)}, v{a} offset:{off+2560}'], tag=('w', len(items)),
                          mf=[f'{MF} {vr(acc(mb,b),4)}, {ar(w,4)}, {vr(OF + g*16 + p*8 + mb*4, 4)}, {"0" if first else vr(acc(mb,b),4)}' for mb in range(2)])
                if p == 0 and b == 0:
                    def head(g=g):
                        em.wait(vm=[('o', g)])
                        trace2(em, cfg, 6 + g)
                        r = OF + g*16
                        em(f'v_max3_u32 v2, v{r}, v{r+1}, v{r+2}\n v_max3_u32 v3, v{r+3}, v{r+4}, v{r+5}')
                        for k in range(6, 16, 4):
                            em(f'v_max3_u32 v2, v2, v{r+k}, v{r+k+1}')
                            if k + 2 < 16: em(f'v_max3_u32 v3, v3, v{r+k+2}, v{r+k+3}')
                        em(f'v_max_u32 v2, v2, v3\n v_cmp_eq_u32 vcc, -1, v2\n s_cbranch_vccnz LP2_bad\nLP2_ok{g}:')
                    it['head'] = head
                items.append(it)
    st.run(items)
    trace2(em, cfg, 11)
    em('s_cmp_eq_u32 s9, 0\n s_cbranch_scc1 LP2_k0\n s_nop 7')
    for b in range(5): em(f'ds_write_b128 v{XW}, {vr(acc(0,b),4)} offset:{b*1024}')
    for j in range(20): em(f'v_mov_b32 v{acc(0,0)+j}, v{acc(1,0)+j}')
    em('s_branch LP2_k1\nLP2_k0:\n s_nop 7')
    for b in range(5): em(f'ds_write_b128 v{XW}, {vr(acc(1,b),4)} offset:{b*1024}')
    em('LP2_k1:\n s_waitcnt lgkmcnt(0)\n s_barrier')
    em.lg = []
    trace2(em, cfg, 12)
    for b in range(5): em.lds(f'ds_read_b128 {vr(OF+4*b,4)}, v{XR} offset:{b*1024}', ('x', b))
    for b in range(5):
        em.wait(lg=[('x', b)])
        a = acc(0, b)
        for j in range(4): em(f'v_add_f32 v{a+j}, v{a+j}, v{OF+4*b+j}')
        pk(em, a, a); pk(em, a+1, a+2)
    for b in range(5): em.lds(f'ds_write_b64 v{TW}, {vr(acc(0,b),2)} offset:{b*32}')
    em.wait_all(vm=False)
    for j in range(3): em.lds(f'ds_read_b128 {vr(OF+4*j,4)}, v{TRD+j}', ('o', j))
    for j in range(3):
        em.wait(lg=[('o', j)])
        if j == 2: em('s_mov_b64 exec, 0xffffffff')
        em.vmem(f'buffer_store_dwordx4 {vr(OF+4*j,4)}, v{STO+j}, {sr(SRD_OUT,4)}, 0 offen')
    em('s_mov_b64 exec, -1')
    trace2(em, cfg, 13)
    if cfg.trace2:
        em('s_waitcnt vmcnt(0)'); trace2(em, cfg, 14); em('v_mov_b32 v27, v23')
    if cfg.stamps:
        em('s_waitcnt vmcnt(0) lgkmcnt(0)\n s_memrealtime s[100:101]\n s_memtime s[4:5]\n s_waitcnt lgkmcnt(0)')
        em(f's_lshl_b32 s3, s2, 3\n s_add_u32 s3, s3, s{S_WAVE}\n s_lshl_b32 s3, s3, 7\n s_add_u32 s3, s3, {WS_STAMP}')
        em('s_mov_b64 exec, 1\n v_mov_b32 v1, s3')
        for i in range(10):
            em(f'v_mov_b32 v2, s{S_STAMP+2*i}\n v_mov_b32 v3, s{S_STAMP+2*i+1}\n buffer_store_dwordx2 v[2:3], v1, {sr(SRD_WS,4)}, 0 offen offset:{8*i}\n s_nop 1')
        em(f'v_mov_b32 v2, s4\n v_mov_b32 v3, s5\n buffer_store_dwordx2 v[2:3], v1, {sr(SRD_WS,4)}, 0 offen offset:80\n s_nop 1')
        em(f'v_mov_b32 v2, s11\n v_mov_b32 v3, s12\n buffer_store_dwordx2 v[2:3], v1, {sr(SRD_WS,4)}, 0 offen offset:88')
        if cfg.trace or cfg.trace2:
            em(f's_mov_b64 exec, -1\n s_lshl_b32 s3, s2, 3\n s_add_u32 s3, s3, s{S_WAVE}\n s_lshl_b32 s3, s3, 8\n s_add_u32 s3, s3, {WS_STAMP + 0x40000}\n v_lshlrev_b32 v1, 2, v0\n buffer_store_dword v27, v1, {sr(SRD_WS,4)}, s3 offen')
    em('s_endpgm')
    em(f'LP2_bad:\n s_waitcnt vmcnt(0) lgkmcnt(0)\n s_add_u32 s12, s12, 1\n s_cmp_lt_u32 s12, {SPIN}\n s_cbranch_scc1 LP2_go\n s_nop 7\n s_branch LP2_ok4')

def kernel(cfg):
    em = Em()
    em('s_cmp_ge_u32 s2, 256\n s_cbranch_scc1 L_end')
    if cfg.stamps: em('s_memrealtime s[98:99]')
    stamp(em, cfg, 0)
    em('s_load_dwordx8 s[4:11], s[0:1], 0\n s_load_dwordx8 s[12:19], s[0:1], 32\n s_load_dwordx2 s[20:21], s[0:1], 64')
    em(f'''v_lshrrev_b32 v1, 6, v0
        v_and_b32 v0, 63, v0
        s_and_b32 s{T0}, s2, 7
        v_readfirstlane_b32 s{S_WAVE}, v1
        s_lshr_b32 s{T1}, s2, 3
        s_lshr_b32 s{S_BR}, s{T0}, 2
        s_and_b32 s{T2}, s{T1}, 7
        s_lshr_b32 s{T3}, s{T1}, 3
        s_and_b32 s3, s{T0}, 2
        s_lshl_b32 s3, s3, 2
        s_add_u32 s{S_RT}, s3, s{T2}
        s_and_b32 s3, s{T0}, 1
        s_lshl_b32 s3, s3, 2
        s_add_u32 s{S_GRP}, s3, s{T3}
        s_lshl_b32 s3, s{T3}, 1
        s_add_u32 s3, s3, s{T2}
        s_and_b32 s3, s3, 7
        s_mul_i32 s3, s3, 10
        s_lshr_b32 s{S_ROT}, s3, 3
        s_and_b32 s{S_W4}, s{S_WAVE}, 3''')
    if cfg.map41:
        em(f'''s_and_b32 s3, s{T0}, 3
            s_lshl_b32 s3, s3, 2
            s_and_b32 s{T2}, s{T1}, 3
            s_add_u32 s{S_RT}, s3, s{T2}
            s_lshr_b32 s{S_GRP}, s{T1}, 2
            s_lshl_b32 s3, s{T2}, 1
            s_add_u32 s3, s3, s{S_GRP}
            s_and_b32 s3, s3, 7
            s_mul_i32 s3, s3, 10
            s_lshr_b32 s{S_ROT}, s3, 3''')
    if cfg.remap:
        em(f's_and_b32 s3, s{T0}, 3\n s_lshl_b32 s3, s3, 2\n s_and_b32 s{S_RT2}, s{T1}, 3\n s_add_u32 s{S_RT2}, s{S_RT2}, s3\n s_lshr_b32 s{S_CT}, s{T1}, 2')
    else:
        em(f's_mov_b32 s{S_RT2}, s{S_RT}\n s_mov_b32 s{S_CT}, s{S_GRP}')
    if not cfg.rot: em(f's_mov_b32 s{S_ROT}, 0')
    em(f's_cmp_eq_u32 s{S_BR}, 0\n s_cbranch_scc1 L_A\n s_cmp_lt_u32 s{S_WAVE}, 4\n s_cbranch_scc1 L_BC')
    head = em.L; lg0 = list(em.lg)
    parts = {}
    for nm, fn, ld in (('BL', B_L, 1), ('BC', B_C, 0), ('AL', A_L, 0), ('AC', A_C, 1)):
        e = Em(); e.lg = list(lg0); fn(e, cfg); e(f's_mov_b32 s13, {ld}')
        parts[nm] = e.L
    nb = {k: sum(l.startswith('s_barrier') for l in v) for k, v in parts.items()}
    assert nb['BL'] == nb['BC'] and nb['AL'] == nb['AC'], nb
    p2 = Em(); phase2(p2, cfg)
    L = head + parts['BL'] + ['s_branch LP2', 'L_A:', f's_cmp_lt_u32 s{S_WAVE}, 4', 's_cbranch_scc1 L_AC'] + parts['AL'] + ['s_branch LP2', 'L_AC:'] + parts['AC'] + \
        ['s_branch LP2', 'L_BC:'] + parts['BC'] + p2.L + ['L_end:', 's_endpgm']
    return L

def build(cfg):
    global PLAIN
    PLAIN = cfg.plain
    k, n = pad_hazards(kernel(cfg))
    sys.stderr.write(f'{len(k)} lines ({n} pad states)\n')
    fmt = lambda L: '\n'.join(l if l.endswith(':') else '    ' + l for l in L)
    return f"""; linear-attention block (A) + dilated sliding-window block (B), concatenated. Generated by gen/gen2.py.
; @launch grid=(256,1,1) block=(512,1,1) lds={LDS_BYTES}
.amdgcn_target "amdgcn-amd-amdhsa--gfx950"
.text
.globl {NAME}_kernel
.p2align 8
.type {NAME}_kernel,@function
{NAME}_kernel:
{fmt(k)}
.section .rodata,"a"
.p2align 6
.amdhsa_kernel {NAME}_kernel
  .amdhsa_next_free_vgpr 256
  .amdhsa_next_free_sgpr 102
  .amdhsa_accum_offset 184
  .amdhsa_group_segment_fixed_size 0
  .amdhsa_kernarg_size 72
  .amdhsa_user_sgpr_count 2
  .amdhsa_user_sgpr_kernarg_segment_ptr 1
  .amdhsa_system_sgpr_workgroup_id_x 1
.end_amdhsa_kernel
"""

if __name__ == '__main__':
    cfg = Cfg()
    for kv in sys.argv[2:]:
        k, v = kv.split('='); setattr(cfg, k, type(getattr(cfg, k))(int(v)))
    open(sys.argv[1], 'w').write(build(cfg))
```
